```python
import torch

def _softmax(x, axis=-1):
    return torch.softmax(x, dim=axis)
def _gelu(x):
    return torch.nn.functional.gelu(x, approximate="tanh")
def _silu(x):
    return torch.nn.functional.silu(x)
def _sigmoid(x):
    return torch.sigmoid(x)
def _layernorm(x, axis=-1, eps=1e-5):
    m = x.mean(dim=axis, keepdim=True)
    v = x.var(dim=axis, keepdim=True, unbiased=False)
    return (x - m) / torch.sqrt(v + eps)
def _scatter_add(tgt, idx, src, axis=0):
    return tgt.clone().index_add_(axis, idx, src)
def _segment_sum(src, seg, n):
    out = torch.zeros((n,) + src.shape[1:], dtype=src.dtype)
    return out.index_add_(0, seg, src)
def _pad(x, pw):
    flat = tuple(v for pair in reversed(pw) for v in pair)
    return torch.nn.functional.pad(x, flat)

kernel_name = 'recurrent_scan__sliding_local_dilated__dense_activation_mish__prompt'

def setup_inputs():

    _w = (lambda a: (lambda t: t.to(torch.bfloat16) if t.is_floating_point() else t)(torch.as_tensor(a)))
    def _A_setup():
        B, S, D = 1, 2048, 448
        return {
            "x": _w((lambda *s: torch.randn(*s, dtype=torch.bfloat16) * 0.05)(B, S, D)),
            "wqkv": _w((lambda *s: torch.randn(*s, dtype=torch.bfloat16) * 0.2)(D, 3 * D)),
            "wo": _w((lambda *s: torch.randn(*s, dtype=torch.bfloat16) * 0.2)(D, D)),
        }
    _A_in = _A_setup()

    def _B_setup():
        B, S, D, F = 1, 2048, 448, 1792
        return {
            "x": _w((lambda *s: torch.randn(*s, dtype=torch.bfloat16) * 0.05)(B, S, D)),
            "w1": _w((lambda *s: torch.randn(*s, dtype=torch.bfloat16) * 0.8)(D, F) * (D ** -0.5)),
            "b1": _w((lambda *s: torch.randn(*s, dtype=torch.bfloat16) * 0.4)(F)),
            "w2": _w((lambda *s: torch.randn(*s, dtype=torch.bfloat16) * 0.1)(F, D) * (F ** -0.5)),
        }
    _B_in = _B_setup()

    return {
        "A_x": _A_in["x"],
        "A_wqkv": _A_in["wqkv"],
        "A_wo": _A_in["wo"],
        "B_x": _B_in["x"],
        "B_w1": _B_in["w1"],
        "B_b1": _B_in["b1"],
        "B_w2": _B_in["w2"],
    }

def reference(A_x, A_wqkv, A_wo, B_x, B_w1, B_b1, B_w2):
    def _A_ref(x, wqkv, wo):
        B, S, D = x.shape
        H = 16; Dh = D // H
        W, dil = 8, 2
        qkv = (lambda x, *d: x.permute(*d))((x @ wqkv).reshape(B, S, 3, H, Dh), 2, 0, 3, 1, 4)
        q, k, v = qkv[0], qkv[1], qkv[2]
        scale = Dh ** -0.5
        pos = torch.arange(S)
        off = torch.arange(W) * dil
        idx = pos[:, None] - off[None, :]
        mask = idx >= 0
        idx_c = torch.where(mask, idx, 0).reshape(-1)
        kg = k[:, :, idx_c, :].reshape(B, H, S, W, Dh)
        vg = v[:, :, idx_c, :].reshape(B, H, S, W, Dh)
        logits = torch.einsum("bhsd,bhswd->bhsw", q, kg) * scale
        logits = torch.where(mask[None, None, :, :], logits, -1e9)
        attn = _softmax(logits, axis=-1)
        o = torch.einsum("bhsw,bhswd->bhsd", attn, vg)
        return (lambda x, *d: x.permute(*d))(o, 0, 2, 1, 3).reshape(B, S, D) @ wo

    def _B_ref(x, w1, b1, w2):
        h = torch.einsum("bsd,df->bsf", x, w1) + b1
        sp = torch.log1p(torch.exp(-torch.abs(h))) + torch.where(h > 0, h, torch.zeros_like(h))
        act = h * torch.tanh(sp)
        return torch.einsum("bsf,fd->bsd", act, w2)

    x = A_x
    xn = _layernorm(x, axis=-1)
    s = _A_ref(xn, A_wqkv, A_wo)
    g = _silu(_B_ref(xn, B_w1, B_b1, B_w2))
    return x + s * g
```

```python
import re

REG_RE = re.compile(r"\b([vas])(?:(\d+)\b|\[(\d+):(\d+)\])")
TRANS = ("v_exp_f32", "v_log_f32", "v_rcp_f32", "v_rsq_f32", "v_sqrt_f32", "v_sin_f32", "v_cos_f32")


def regs_of(tok):
    out = set()
    for m in REG_RE.finditer(tok):
        k = m.group(1)
        if m.group(2) is not None:
            out.add((k, int(m.group(2))))
        else:
            for i in range(int(m.group(3)), int(m.group(4)) + 1):
                out.add((k, i))
    t = tok.strip()
    t = t.lstrip("-|").rstrip("|")
    if t == "vcc":
        out |= {("s", "vcc_lo"), ("s", "vcc_hi")}
    elif t in ("vcc_lo", "vcc_hi", "m0", "exec_lo", "exec_hi"):
        out.add(("s", t))
    elif t == "exec":
        out |= {("s", "exec_lo"), ("s", "exec_hi")}
    return out


def split_ops(s):
    ops, depth, cur = [], 0, ""
    for ch in s:
        if ch == "[":
            depth += 1
        if ch == "]":
            depth -= 1
        if ch == "," and depth == 0:
            ops.append(cur.strip())
            cur = ""
        else:
            cur += ch
    if cur.strip():
        ops.append(cur.strip())
    return ops


class Inst:
    __slots__ = ("text", "op", "kind", "dst", "src", "srcC", "srcAB", "passes", "label", "target", "nslots", "lds_dma",
                 "wide_store_data", "ops")

    def __init__(self, text):
        self.text = text
        self.label = None
        self.target = None
        self.dst, self.src, self.srcC, self.srcAB = set(), set(), set(), set()
        self.passes = 0
        self.nslots = 1
        self.lds_dma = False
        self.wide_store_data = set()
        self.ops = []
        t = text.split(";")[0].strip()
        if t.endswith(":"):
            self.kind = "label"
            self.label = t[:-1]
            self.op = ""
            self.nslots = 0
            return
        if not t or t.startswith("."):
            self.kind = "dir"
            self.op = ""
            self.nslots = 0
            return
        parts = t.split(None, 1)
        op = parts[0]
        self.op = op
        rest = parts[1] if len(parts) > 1 else ""
        mods = ""
        m = re.search(r"\s+(offen|offset:|op_sel|neg_lo|neg_hi|lds\b|sc0|sc1|nt\b|clamp|idxen|off\b|quad_perm|row_|cbsz|blgp|abid|mul:|div:)", rest)
        if m:
            mods = rest[m.start():]
            rest = rest[:m.start()]
        ops = split_ops(rest)
        self.ops = ops
        R = [regs_of(o) for o in ops]
        if op.startswith("v_mfma"):
            self.kind = "mfma"
            self.dst = R[0]
            self.srcAB = R[1] | R[2]
            self.srcC = R[3] if len(R) > 3 else set()
            self.src = self.srcAB | self.srcC
            self.passes = 8 if "32x32" in op else 4
        elif op.startswith("v_"):
            self.kind = "valu"
            if op.startswith("v_cmp"):
                self.dst = R[0]
                for r in R[1:]:
                    self.src |= r
                if op.startswith("v_cmpx"):
                    self.dst |= regs_of("exec")
            elif op.startswith("v_permlane") and "swap" in op:
                self.dst = R[0] | R[1]
                self.src = R[0] | R[1]
            elif op.startswith(("v_add_co", "v_sub_co", "v_addc_co", "v_subb_co", "v_subrev_co")):
                self.dst = R[0] | R[1]
                for r in R[2:]:
                    self.src |= r
            else:
                self.dst = R[0]
                for r in R[1:]:
                    self.src |= r
                if op.startswith(("v_fmac", "v_dot2c", "v_mac", "v_pk_fmac")):
                    self.src |= R[0]
                if op.startswith("v_cndmask_b32") and len(ops) == 3:
                    self.src |= regs_of("vcc")
        elif op.startswith("ds_"):
            self.kind = "ds"
            if op.startswith("ds_read"):
                self.dst = R[0]
                for r in R[1:]:
                    self.src |= r
            else:
                for r in R:
                    self.src |= r
        elif op.startswith(("buffer_", "global_")):
            self.kind = "vmem"
            if "lds" in mods.split():
                self.lds_dma = True
                for r in R:
                    self.src |= r
                self.src.add(("s", "m0"))
            elif "load" in op:
                self.dst = R[0]
                for r in R[1:]:
                    self.src |= r
            else:
                for r in R:
                    self.src |= r
                if "dwordx4" in op or "dwordx3" in op:
                    self.wide_store_data = R[0] if op.startswith("buffer_") else R[1]
        elif op.startswith("s_"):
            self.kind = "salu"
            if op == "s_nop":
                self.nslots = int(ops[0], 0) + 1
            elif op.startswith(("s_cbranch", "s_branch")):
                self.kind = "branch"
                self.target = ops[0]
            elif op.startswith(("s_waitcnt", "s_barrier", "s_endpgm", "s_setprio", "s_sleep")):
                pass
            elif op.startswith(("s_cmp", "s_bitcmp")):
                for r in R:
                    self.src |= r
            elif op.startswith(("s_load", "s_buffer_load")):
                self.kind = "smem"
                self.dst = R[0]
                for r in R[1:]:
                    self.src |= r
            else:
                if R:
                    self.dst = R[0]
                for r in R[1:]:
                    self.src |= r
                if "saveexec" in op:
                    self.dst |= regs_of("exec")
        else:
            raise ValueError("unknown instruction: " + text)


def is_v(rs):
    return {r for r in rs if r[0] in ("v", "a")}


def is_s(rs):
    return {r for r in rs if r[0] == "s"}


def need(prod, cons):
    n = 0
    pk, ck = prod.kind, cons.kind
    if pk == "valu":
        pv, ps = is_v(prod.dst), is_s(prod.dst)
        if ck == "mfma" and pv & cons.src:
            n = max(n, 2)
        if ck == "valu":
            if pv & cons.src:
                if cons.op.startswith("v_permlane") or "dpp" in cons.text or "quad_perm" in cons.text or "row_" in cons.text:
                    n = max(n, 2)
                if cons.op.startswith(("v_readfirstlane", "v_readlane")):
                    n = max(n, 1)
                if prod.op.startswith(TRANS) and not cons.op.startswith(TRANS):
                    n = max(n, 1)
                if prod.op.startswith(TRANS) and cons.op.startswith(TRANS):
                    n = max(n, 1)
            if prod.op.startswith("v_dot"):
                if pv & (cons.src | is_v(cons.dst)):
                    same = prod.op == cons.op
                    if same and len(cons.ops) == 4:
                        ab = regs_of(cons.ops[1]) | regs_of(cons.ops[2])
                        if pv & ab:
                            n = max(n, 3)
                    elif same and cons.op.startswith("v_dot2c"):
                        ab = regs_of(cons.ops[1]) | regs_of(cons.ops[2])
                        if pv & ab:
                            n = max(n, 3)
                    else:
                        n = max(n, 3)
            if ps & cons.src:
                n = max(n, 4 if cons.op.startswith(("v_readlane", "v_writelane")) else 2)
        if ck in ("vmem", "ds") and prod.op.startswith("v_dot") and pv & cons.src:
            n = max(n, 3)
        if ck in ("vmem", "ds") and prod.op.startswith(TRANS) and pv & cons.src:
            n = max(n, 1)
        if ck == "vmem" and ps & cons.src:
            n = max(n, 5)
        if ck == "mfma" and ("s", "exec_lo") in ps:
            n = max(n, 4)
    elif pk == "mfma":
        p = prod.passes
        if ck == "mfma":
            if prod.dst & cons.srcAB:
                n = max(n, 12 if p == 8 else 8)
            if prod.dst & cons.srcC:
                if not (prod.dst == cons.srcC and prod.passes == cons.passes):
                    n = max(n, 10 if p == 8 else 6)
            if prod.dst & cons.dst and not (prod.dst & cons.srcC):
                if prod.passes != cons.passes or prod.dst != cons.dst:
                    n = max(n, 10 if p == 8 else 6)
        elif ck == "valu":
            if prod.dst & (cons.src | cons.dst):
                n = max(n, 12 if p == 8 else 8)
            if prod.srcC & cons.dst:
                n = max(n, 7 if p == 8 else 3)
        elif ck in ("vmem", "ds"):
            if prod.dst & (cons.src | cons.dst):
                n = max(n, 12 if p == 8 else 8)
            if prod.srcC & cons.dst:
                n = max(n, 7 if p == 8 else 3)
    elif pk == "vmem":
        if prod.wide_store_data & cons.dst:
            n = max(n, 2 if ck == "valu" else 1)
    elif pk == "salu":
        if ("s", "m0") in prod.dst and cons.lds_dma:
            n = max(n, 1)
    return n


HORIZON = 20


class Asm:
    def __init__(self):
        self.lines = []
        self.vm = []
        self.lg = []
        self.uid = 0

    def __call__(self, text):
        for ln in text.split("\n"):
            ln = ln.strip()
            if ln:
                self.lines.append(ln)

    def label(self, name):
        self.lines.append(name + ":")

    def newlabel(self, base):
        self.uid += 1
        return f"{base}_{self.uid}"

    def vmem(self, text):
        self(text)
        tok = object()
        self.vm.append(tok)
        return tok

    def ds(self, text):
        self(text)
        tok = object()
        self.lg.append(tok)
        return tok

    def wait_vm(self, tok):
        if tok not in self.vm:
            return
        i = self.vm.index(tok)
        n = len(self.vm) - 1 - i
        assert n <= 63, n
        self(f"s_waitcnt vmcnt({n})")
        self.vm = self.vm[i + 1:]

    def wait_vm_all(self):
        self("s_waitcnt vmcnt(0)")
        self.vm = []

    def wait_lg(self, tok):
        if tok not in self.lg:
            return
        i = self.lg.index(tok)
        n = len(self.lg) - 1 - i
        if n > 15:
            n = 15
            i = len(self.lg) - 1 - 15
        self(f"s_waitcnt lgkmcnt({n})")
        self.lg = self.lg[i + 1:]

    def wait_lg_all(self):
        self("s_waitcnt lgkmcnt(0)")
        self.lg = []

    def reset_counts(self):
        self.vm, self.lg = [], []


def pad_hazards(lines):
    insts = [Inst(l) for l in lines]
    entry = {}
    for _ in range(10):
        out, new_entry, win = [], {}, []
        for idx, c in enumerate(insts):
            if c.kind == "dir":
                out.append(c)
                continue
            if c.kind == "label":
                win = win + entry.get(c.label, [])
                out.append(c)
                continue
            worst = 0
            for p, el in win:
                worst = max(worst, need(p, c) - el)
            if worst > 0:
                n = worst
                while n > 0:
                    k = min(n, 16)
                    out.append(Inst(f"s_nop {k - 1}"))
                    n -= k
                win = [(p, el + worst) for p, el in win]
            out.append(c)
            win = [(p, el + c.nslots) for p, el in win if el + c.nslots < HORIZON]
            if c.kind in ("valu", "mfma") or (c.kind == "salu" and ("s", "m0") in c.dst) or (c.kind == "vmem" and c.wide_store_data):
                win.append((c, 0))
            if c.kind == "branch":
                new_entry.setdefault(c.target, []).extend(win)
                if c.op == "s_branch":
                    win = []
            if c.op == "s_endpgm":
                win = []
        key = lambda e: {k: sorted((id(p), el) for p, el in v) for k, v in e.items()}
        merged = {k: list(v) for k, v in entry.items()}
        for k, v in new_entry.items():
            best = {}
            for p, el in merged.get(k, []) + v:
                if id(p) not in best or el < best[id(p)][1]:
                    best[id(p)] = (p, el)
            merged[k] = list(best.values())
        if key(merged) == key(entry):
            return [x.text for x in out]
        entry = merged
    raise RuntimeError("hazard padding did not converge")


def render(lines):
    out = []
    for l in lines:
        if l.endswith(":") or l.startswith("."):
            out.append(l)
        else:
            out.append("    " + l)
    return "\n".join(out) + "\n"
```

```python
from asmgen import Asm
from gen import v, a, s, srd, K1, NKS, AO_SIZE, WP_OFF, WP_SIZE, X_BYTES, LOG2E

LDS_BYTES = 163840
SRD_X, SRD_W, SRD_AO, SRD_PP, SRD_WP, SRD_B = 20, 24, 28, 32, 36, 40
sWAVE, sRB, sSEL, sI, sP, sIP = 3, 44, 45, 46, 47, 48
sT0, sT1 = 49, 50
OOB = 0x40000000
ONES = 0x3F803F80


def fbits(x):
    import struct
    return struct.unpack("<I", struct.pack("<f", x))[0]


def dma(A, voff, srd_, gbase, gimm, lbase, limm):
    A(f"s_add_u32 m0, {s(lbase)}, {limm}")
    A(f"s_add_u32 {s(sT0)}, {s(gbase)}, {gimm}")
    return A.vmem(f"buffer_load_dwordx4 {v(voff)}, {s(srd_, 4)}, {s(sT0)} offen lds")


def x_dma_voff(A, dst, t0, t1):
    A(f"v_lshrrev_b32 {v(t0)}, 4, v0")
    A(f"s_and_b32 {s(sT0)}, {s(sWAVE)}, 1")
    A(f"s_lshl_b32 {s(sT0)}, {s(sT0)}, 2")
    A(f"v_add_u32 {v(t0)}, {s(sT0)}, {v(t0)}")
    A(f"v_and_b32 {v(t1)}, 7, v0")
    A(f"v_xor_b32 {v(t0)}, {v(t0)}, {v(t1)}")
    A(f"v_lshrrev_b32 {v(t1)}, 3, v0")
    A(f"v_mul_u32_u24 {v(t1)}, 896, {v(t1)}")
    A(f"v_lshl_add_u32 {v(dst)}, {v(t0)}, 4, {v(t1)}")


def x_read_addr(A, dst, t0, t1, t2, base):
    A(f"v_and_b32 {v(t0)}, 15, v0")
    A(f"v_lshlrev_b32 {v(t0)}, 1, {v(t0)}")
    A(f"v_bfe_u32 {v(t1)}, v0, 4, 1")
    A(f"v_add_u32 {v(t0)}, {v(t0)}, {v(t1)}")
    A(f"s_lshl_b32 {s(sT0)}, {s(sI)}, 5")
    A(f"v_add_u32 {v(t0)}, {s(sT0)}, {v(t0)}")
    A(f"v_lshlrev_b32 {v(t0)}, 7, {v(t0)}")
    A(f"v_and_b32 {v(t1)}, 3, v0")
    A(f"v_bfe_u32 {v(t2)}, v0, 3, 1")
    A(f"v_lshl_add_u32 {v(t1)}, {v(t2)}, 2, {v(t1)}")
    A(f"v_lshrrev_b32 {v(t2)}, 5, v0")
    A(f"s_lshl_b32 {s(sT0)}, {s(sIP)}, 1")
    A(f"v_add_u32 {v(t2)}, {s(sT0)}, {v(t2)}")
    A(f"v_xor_b32 {v(t1)}, {v(t1)}, {v(t2)}")
    A(f"v_lshl_add_u32 {v(t0)}, {v(t1)}, 4, {v(t0)}")
    A(f"v_add_u32 {v(dst)}, {base}, {v(t0)}")
    for q in range(1, 4):
        A(f"v_xor_b32 {v(dst + q)}, {32 * q}, {v(dst)}")


def tr_lane_part(A, dst, t0, t1, colbase, row_hh_shift):
    A(f"v_lshrrev_b32 {v(t0)}, 5, v0")
    A(f"v_lshlrev_b32 {v(t0)}, {row_hh_shift}, {v(t0)}")
    A(f"v_bfe_u32 {v(t1)}, v0, 2, 2")
    A(f"v_add_u32 {v(t0)}, {v(t0)}, {v(t1)}")
    A(f"v_lshlrev_b32 {v(t0)}, 7, {v(t0)}")
    A(f"v_bfe_u32 {v(t1)}, v0, 4, 1")
    A(f"v_lshlrev_b32 {v(t1)}, 5, {v(t1)}")
    A(f"v_and_b32 {v(dst)}, 3, v0")
    A(f"v_lshl_add_u32 {v(t1)}, {v(dst)}, 3, {v(t1)}")
    A(f"v_add_u32 {v(t1)}, {colbase}, {v(t1)}")
    A(f"v_bfe_u32 {v(dst)}, v0, 3, 1")
    A(f"v_lshlrev_b32 {v(dst)}, 6, {v(dst)}")
    A(f"v_xor_b32 {v(t1)}, {v(t1)}, {v(dst)}")
    A(f"v_add_u32 {v(dst)}, {v(t0)}, {v(t1)}")


def split_neg_mean_sigma(A, sq, t, augB, rs_dst, rs_scale, with_sigma):
    m, e2, ve, pk, hi = t, t + 1, t + 2, t + 3, t + 4
    A(f"v_mul_f32 {v(m)}, {fbits(-1.0 / 448):#x}, {v(sq)}")
    A(f"v_mul_f32 {v(e2)}, {fbits(1.0 / 448):#x}, {v(sq + 1)}")
    A(f"v_fma_f32 {v(ve)}, -{v(m)}, {v(m)}, {v(e2)}")
    A(f"v_max_f32 {v(ve)}, 0, {v(ve)}")
    A(f"v_add_f32 {v(ve)}, {fbits(1e-5):#x}, {v(ve)}")
    A(f"v_rsq_f32 {v(e2)}, {v(ve)}")
    A(f"v_cvt_pk_bf16_f32 {v(augB)}, {v(m)}, {v(m)}")
    A(f"v_and_b32 {v(hi)}, 0xffff0000, {v(augB)}")
    A(f"v_sub_f32 {v(m)}, {v(m)}, {v(hi)}")
    if with_sigma:
        A(f"v_mul_f32 {v(ve)}, {v(ve)}, {v(e2)}")
        A(f"v_cvt_pk_bf16_f32 {v(pk)}, {v(ve)}, {v(ve)}")
        A(f"v_and_b32 {v(hi)}, 0xffff0000, {v(pk)}")
        A(f"v_sub_f32 {v(ve)}, {v(ve)}, {v(hi)}")
        A(f"v_cvt_pk_bf16_f32 {v(augB + 1)}, {v(m)}, {v(hi)}")
        A(f"v_cvt_pk_bf16_f32 {v(augB + 2)}, {v(ve)}, 0")
    else:
        A(f"v_cvt_pk_bf16_f32 {v(augB + 1)}, {v(m)}, 0")
        A(f"v_mov_b32 {v(augB + 2)}, 0")
    A(f"v_mov_b32 {v(augB + 3)}, 0")
    if rs_scale is None:
        A(f"v_mov_b32 {v(rs_dst)}, {v(e2)}")
    else:
        A(f"v_mul_f32 {v(rs_dst)}, {rs_scale:#x}, {v(e2)}")
    A("s_mov_b32 exec_lo, 0")
    for k in range(3):
        A(f"v_mov_b32 {v(augB + k)}, 0")
    A("s_mov_b32 exec_lo, -1")


def colsum_ops(part, augA, bias):
    o = []
    o.append(f"v_pk_add_f32 {v(part, 2)}, {v(part, 2)}, {v(part + 4, 2)}")
    o.append(f"v_pk_add_f32 {v(part + 2, 2)}, {v(part + 2, 2)}, {v(part + 6, 2)}")
    o.append(f"v_pk_add_f32 {v(part, 2)}, {v(part, 2)}, {v(part + 2, 2)}")
    o.append(f"v_add_f32 {v(part)}, {v(part)}, {v(part + 1)}")
    o.append(f"v_cvt_pk_bf16_f32 {v(part + 1)}, {v(part)}, {v(part)}")
    o.append(f"v_and_b32 {v(part + 2)}, 0xffff0000, {v(part + 1)}")
    o.append(f"v_sub_f32 {v(part)}, {v(part)}, {v(part + 2)}")
    o.append(f"v_and_b32 {v(part + 1)}, 0xffff, {v(part + 1)}")
    o.append(f"v_cvt_pk_bf16_f32 {v(augA)}, {v(part + 2)}, {v(part)}")
    if bias is not None:
        o.append(f"v_lshl_or_b32 {v(augA + 1)}, {v(bias)}, 16, {v(part + 1)}")
        o.append(f"v_mov_b32 {v(augA + 2)}, {v(bias)}")
    else:
        o.append(f"v_mov_b32 {v(augA + 1)}, {v(part + 1)}")
    return o


def gen_ffn(A):
    WA, X0, P1, MISC = 0, 57344, 73728, 155648
    CSP, STP = MISC, MISC + 2048
    vXoff, vWoff, vXrd, vWrd, vSt, vRs, vBias = 1, 2, 4, 8, 12, 13, 14
    augB, augA, vCs, vSum, vOnes, vHalf, vOne = 18, 22, 26, 28, 31, 32, 34
    vCsW, vCsR = 27, 30
    WB, accM, accE, T, U, P, PART, TMP = 36, 52, 68, 84, 92, 100, 108, 116
    X = 128
    sXg, sXl, sWg, sWl, sAct, sRound, sBuf, sOdd, sLine = 52, 53, 54, 55, 56, 57, 58, 59, 60
    sPPg, sPPl, sPPd, sActive, sActN = 61, 62, 63, 64, 65
    A.reset_counts()
    A.label("FFN")
    A(f"s_and_b32 {s(sOdd)}, {s(sSEL)}, 1")
    A(f"s_mul_i32 {s(sLine)}, {s(sSEL)}, 7")
    A(f"s_lshr_b32 {s(sLine)}, {s(sLine)}, 1")
    A(f"s_lshl_b32 {s(sXg)}, {s(sRB)}, 7")
    A(f"s_lshl_b32 {s(sT0)}, {s(sWAVE)}, 4")
    A(f"s_add_u32 {s(sXg)}, {s(sXg)}, {s(sT0)}")
    A(f"s_mul_i32 {s(sXg)}, {s(sXg)}, 896")
    A(f"s_lshl_b32 {s(sXl)}, {s(sWAVE)}, 11")
    A(f"s_lshl_b32 {s(sWl)}, {s(sWAVE)}, 10")
    A(f"s_add_u32 {s(sT0)}, {s(sLine)}, {s(sOdd)}")
    A(f"s_lshl_b32 {s(sT0)}, {s(sT0)}, 7")
    A(f"s_mul_i32 {s(sWg)}, {s(sWAVE)}, {8 * 3584}")
    A(f"s_add_u32 {s(sWg)}, {s(sWg)}, {s(sT0)}")
    x_dma_voff(A, vXoff, TMP, TMP + 1)
    A(f"v_bfe_u32 {v(TMP)}, v0, 4, 1")
    A(f"v_lshlrev_b32 {v(TMP)}, 2, {v(TMP)}")
    A(f"v_and_b32 {v(TMP + 1)}, 7, v0")
    A(f"v_xor_b32 {v(TMP)}, {v(TMP)}, {v(TMP + 1)}")
    A(f"v_lshlrev_b32 {v(TMP + 4)}, 4, {v(TMP)}")
    A(f"v_lshrrev_b32 {v(TMP + 1)}, 3, v0")
    A(f"v_mul_u32_u24 {v(TMP + 1)}, 3584, {v(TMP + 1)}")
    A(f"v_add_u32 {v(vWoff)}, {v(TMP + 4)}, {v(TMP + 1)}")
    A("s_waitcnt lgkmcnt(0)")
    srd(A, SRD_X, 4, X_BYTES)
    srd(A, SRD_W, 12, 448 * 1792 * 2)

    def xdma(c, slot):
        t0 = dma(A, vXoff, SRD_X, sXg, 128 * c, sXl, slot)
        t1 = dma(A, vXoff, SRD_X, sXg, 128 * c + 7168, sXl, slot + 1024)
        return t1

    def wdma(c, buf):
        return dma(A, vWoff, SRD_W, sWg, c * 64 * 3584, sWl, buf + 8192 * c)

    xt, wt = {}, {}
    xt[0] = xdma(0, X0)
    wt[0] = wdma(0, WA)
    A(f"s_lshl_b32 {s(sT0)}, {s(sRB)}, 3")
    A(f"s_add_u32 {s(sT0)}, {s(sT0)}, {s(sSEL)}")
    A(f"s_lshl_b32 {s(sT0)}, {s(sT0)}, 3")
    A(f"s_add_u32 s70, {s(sT0)}, {s(sWAVE)}")
    A("s_mul_hi_u32 s71, s70, 29826162")
    A(f"s_mul_i32 s72, s71, {NKS}")
    A("s_sub_u32 s72, s70, s72")
    A(f"s_mul_i32 {s(sPPd)}, s71, {NKS}")
    A(f"s_add_u32 {s(sPPd)}, {s(sPPd)}, s72")
    A(f"s_lshl_b32 {s(sPPd)}, {s(sPPd)}, 11")
    A("s_lshr_b32 s73, s72, 1")
    A("s_mul_i32 s73, s73, 28")
    A("s_and_b32 s74, s72, 1")
    A("s_lshl_b32 s75, s74, 4")
    A("s_add_u32 s73, s73, s75")
    A("s_sub_u32 s75, s72, 32")
    A("s_lshl_b32 s75, s75, 4")
    A("s_cmp_lt_u32 s72, 32")
    A("s_cselect_b32 s73, s73, s75")
    A("s_cselect_b32 s76, s8, s10")
    A("s_cselect_b32 s77, s9, s11")
    A(f"s_mov_b32 s78, {1792 * 448 * 2}")
    A(f"s_cselect_b32 s78, {448 * 448 * 2}, s78")
    A("s_cselect_b32 s79, 1, 0")
    A(f"s_mov_b32 {s(SRD_PP)}, s76")
    A(f"s_mov_b32 {s(SRD_PP + 1)}, s77")
    A(f"s_mov_b32 {s(SRD_PP + 2)}, s78")
    A(f"s_mov_b32 {s(SRD_PP + 3)}, 0x20000")
    A(f"s_mul_i32 {s(sPPg)}, s73, 896")
    A("s_lshl_b32 s75, s71, 7")
    A(f"s_add_u32 {s(sPPg)}, {s(sPPg)}, s75")
    A("s_cmp_ge_u32 s70, 1008")
    A(f"s_cselect_b32 {s(sPPg)}, {OOB}, {s(sPPg)}")
    A(f"s_cselect_b32 {s(sPPd)}, {OOB}, {s(sPPd)}")
    A(f"v_lshrrev_b32 {v(TMP)}, 3, v0")
    A(f"v_and_b32 {v(TMP + 1)}, 3, {v(TMP)}")
    A(f"v_lshrrev_b32 {v(TMP + 2)}, 2, {v(TMP)}")
    A(f"v_lshl_add_u32 {v(TMP + 1)}, {v(TMP + 2)}, 3, {v(TMP + 1)}")
    A("s_cmp_eq_u32 s79, 1")
    A("s_cselect_b64 vcc, -1, 0")
    A("s_cselect_b32 s75, 4, 8")
    A(f"v_cndmask_b32 {v(TMP)}, {v(TMP)}, {v(TMP + 1)}, vcc")
    A(f"v_mul_u32_u24 {v(TMP + 1)}, 896, {v(TMP)}")
    A(f"v_add_u32 {v(TMP + 1)}, {v(TMP + 1)}, {v(TMP + 4)}")
    A("s_mul_i32 s75, s75, 896")
    A(f"v_add_u32 {v(TMP + 3)}, s75, {v(TMP + 1)}")
    A("s_and_b32 s75, s79, s74")
    A(f"s_mul_i32 s75, s75, {OOB}")
    A(f"v_mul_lo_u32 {v(TMP + 2)}, {v(TMP + 2)}, s75")
    A(f"v_add_u32 {v(TMP + 3)}, {v(TMP + 3)}, {v(TMP + 2)}")
    A(f"s_lshl_b32 {s(sPPl)}, {s(sWAVE)}, 11")
    PPS = X0 + 5 * 16384
    dma(A, TMP + 1, SRD_PP, sPPg, 0, sPPl, PPS)
    ppt = dma(A, TMP + 3, SRD_PP, sPPg, 0, sPPl, PPS + 1024)
    for c in range(1, 5):
        xt[c] = xdma(c, X0 + 16384 * c)
        wt[c] = wdma(c, WA)
    wt[5] = wdma(5, WA)
    wt[6] = wdma(6, WA)
    srd(A, SRD_AO, 16, AO_SIZE)
    srd(A, SRD_WP, 16, WP_SIZE, WP_OFF)
    srd(A, SRD_B, 14, 1792 * 2)
    A(f"v_and_b32 {v(TMP)}, 31, v0")
    A(f"v_lshlrev_b32 {v(TMP)}, 1, {v(TMP)}")
    for r in range(4):
        A(f"s_add_u32 {s(sT0)}, {s(sOdd)}, {r}")
        A(f"s_and_b32 {s(sT0)}, {s(sT0)}, 3")
        A(f"s_add_u32 {s(sT0)}, {s(sT0)}, {s(sLine)}")
        A(f"s_lshl_b32 {s(sT0)}, {s(sT0)}, 7")
        A(f"s_lshl_b32 {s(sT1)}, {s(sP)}, 6")
        A(f"s_add_u32 {s(sT0)}, {s(sT0)}, {s(sT1)}")
        bt = A.vmem(f"buffer_load_ushort {v(vBias + r)}, {v(TMP)}, {s(SRD_B, 4)}, {s(sT0)} offen")
    A(f"v_lshlrev_b32 {v(vSt)}, 4, v0")
    x_read_addr(A, vXrd, TMP, TMP + 1, TMP + 2, X0)
    A(f"s_lshl_b32 {s(sT1)}, {s(sP)}, 6")
    tr_lane_part(A, TMP + 5, TMP, TMP + 1, s(sT1), 3)
    for q in range(4):
        A(f"s_xor_b32 {s(sT0)}, {s(sIP)}, {q}")
        A(f"s_lshl_b32 {s(sT0)}, {s(sT0)}, 11")
        A(f"v_add_u32 {v(vWrd + q)}, {s(sT0)}, {v(TMP + 5)}")
    A(f"v_mov_b32 {v(vOnes)}, {ONES:#x}")
    A(f"v_mov_b32 {v(vHalf)}, 0.5")
    A(f"v_mov_b32 {v(vOne)}, 1.0")
    A(f"v_mov_b32 {v(vSum)}, 0")
    A(f"v_mov_b32 {v(vSum + 1)}, 0")
    A(f"v_mov_b32 {v(vCs)}, 0")
    A(f"v_mov_b32 {v(augA + 3)}, 0")
    A(f"v_and_b32 {v(TMP)}, 31, v0")
    A(f"v_lshlrev_b32 {v(TMP)}, 5, {v(TMP)}")
    A(f"s_lshl_b32 {s(sT0)}, {s(sP)}, 10")
    A(f"s_add_u32 {s(sT0)}, {s(sT0)}, {CSP}")
    A(f"v_add_u32 {v(vCsR)}, {s(sT0)}, {v(TMP)}")
    A(f"v_lshrrev_b32 {v(TMP)}, 5, v0")
    A(f"s_lshl_b32 {s(sT0)}, {s(sI)}, 1")
    A(f"v_add_u32 {v(TMP)}, {s(sT0)}, {v(TMP)}")
    A(f"v_lshl_add_u32 {v(vCsW)}, {v(TMP)}, 2, {v(vCsR)}")
    tr_lane_part(A, TMP + 5, TMP, TMP + 1, "0", 2)
    A(f"s_add_u32 {s(sT0)}, {s(sPPl)}, {PPS}")
    A(f"v_add_u32 {v(TMP + 5)}, {s(sT0)}, {v(TMP + 5)}")
    A(f"v_xor_b32 {v(TMP + 6)}, 64, {v(TMP + 5)}")
    A.wait_vm(ppt)
    A.ds(f"ds_read_b64_tr_b16 {v(T, 2)}, {v(TMP + 5)}")
    A.ds(f"ds_read_b64_tr_b16 {v(T + 2, 2)}, {v(TMP + 5)} offset:1024")
    A.ds(f"ds_read_b64_tr_b16 {v(T + 4, 2)}, {v(TMP + 6)}")
    A.ds(f"ds_read_b64_tr_b16 {v(T + 6, 2)}, {v(TMP + 6)} offset:1024")
    A.wait_lg_all()
    A.vmem(f"buffer_store_dwordx4 {v(T, 4)}, {v(vSt)}, {s(SRD_WP, 4)}, {s(sPPd)} offen")
    A.vmem(f"buffer_store_dwordx4 {v(T + 4, 4)}, {v(vSt)}, {s(SRD_WP, 4)}, {s(sPPd)} offen offset:1024")
    A(f"s_add_u32 {s(sT0)}, {s(sOdd)}, 1")
    A(f"s_and_b32 {s(sT0)}, {s(sT0)}, 3")
    A(f"s_sub_u32 {s(sT0)}, {s(sT0)}, {s(sOdd)}")
    A(f"s_lshl_b32 {s(sT0)}, {s(sT0)}, 7")
    A(f"s_add_u32 s66, {s(sWg)}, {s(sT0)}")
    A(f"s_lshl_b32 {s(sT0)}, {s(sRB)}, 2")
    A(f"s_add_u32 {s(sT0)}, {s(sT0)}, {s(sI)}")
    A(f"s_mul_i32 s67, {s(sT0)}, {NKS}")
    A("s_add_u32 s67, s67, 32")
    A(f"s_lshl_b32 {s(sT0)}, {s(sP)}, 1")
    A(f"s_add_u32 s67, s67, {s(sT0)}")

    def act_off(dst, r_expr_sgpr):
        A(f"s_add_u32 {s(sT0)}, {s(sOdd)}, {r_expr_sgpr}")
        A(f"s_and_b32 {s(sT0)}, {s(sT0)}, 3")
        A(f"s_add_u32 {s(sT0)}, {s(sT0)}, {s(sLine)}")
        A(f"s_lshl_b32 {s(sT0)}, {s(sT0)}, 2")
        A(f"s_add_u32 {s(sT0)}, {s(sT0)}, s67")
        A(f"s_lshl_b32 {s(dst)}, {s(sT0)}, 10")

    p1 = {}
    for c in range(7):
        A.wait_vm(xt[c])
        A.wait_vm(wt[c])
        A.wait_lg_all()
        A("s_barrier")
        if c == 1:
            xt[5] = xdma(5, X0 + 5 * 16384)
            xt[6] = xdma(6, X0)
        if c >= 2 and c <= 5:
            for cc in ((0, 1), (2, 3), (4, 5), (6,))[c - 2]:
                p1[cc] = dma(A, vWoff, SRD_W, 66, cc * 64 * 3584, sWl, P1 + 8192 * cc)
        if c > 0:
            delta = 16384 if c < 6 else -5 * 16384
            for q in range(4):
                A(f"v_add_u32 {v(vXrd + q)}, {delta}, {v(vXrd + q)}")
        rx, rw = {}, {}
        for q in range(4):
            rx[q] = A.ds(f"ds_read_b128 {v(X + 16 * c + 4 * q, 4)}, {v(vXrd + q)}")
            A.ds(f"ds_read_b64_tr_b16 {v(WB + 4 * q, 2)}, {v(vWrd + q)} offset:{8192 * c}")
            rw[q] = A.ds(f"ds_read_b64_tr_b16 {v(WB + 4 * q + 2, 2)}, {v(vWrd + q)} offset:{8192 * c + 512}")
        for q in range(4):
            A.wait_lg(rw[q])
            xr = X + 16 * c + 4 * q
            cin = "0" if (c == 0 and q == 0) else v(accM, 16)
            A(f"v_mfma_f32_32x32x16_bf16 {v(accM, 16)}, {v(WB + 4 * q, 4)}, {v(xr, 4)}, {cin}")
            if q == 0:
                for k in range(4):
                    A(f"v_dot2_f32_bf16 {v(vCs)}, {v(WB + k)}, {v(vOnes)}, {v(vCs)}")
            if q in (0, 2):
                for k in range(4):
                    A(f"v_dot2_f32_bf16 {v(vSum)}, {v(xr + k)}, {v(vOnes)}, {v(vSum)}")
                    A(f"v_dot2_f32_bf16 {v(vSum + 1)}, {v(xr + k)}, {v(xr + k)}, {v(vSum + 1)}")
    A(f"v_and_b32 {v(TMP)}, 31, v0")
    A(f"v_lshlrev_b32 {v(TMP)}, 5, {v(TMP)}")
    A(f"s_lshl_b32 {s(sT0)}, {s(sI)}, 10")
    A(f"s_add_u32 {s(sT0)}, {s(sT0)}, {STP}")
    A(f"v_add_u32 {v(TMP)}, {s(sT0)}, {v(TMP)}")
    A(f"v_lshrrev_b32 {v(TMP + 1)}, 5, v0")
    A(f"s_lshl_b32 {s(sT0)}, {s(sP)}, 1")
    A(f"v_add_u32 {v(TMP + 1)}, {s(sT0)}, {v(TMP + 1)}")
    A(f"v_lshl_add_u32 {v(TMP + 1)}, {v(TMP + 1)}, 3, {v(TMP)}")
    A.ds(f"ds_write_b64 {v(TMP + 1)}, {v(vSum, 2)}")
    A.ds(f"ds_write_b32 {v(vCsW)}, {v(vCs)}")
    A.wait_vm(p1[6])
    A.wait_vm(bt)
    A.wait_lg_all()
    A("s_barrier")
    A.ds(f"ds_read_b128 {v(T, 4)}, {v(TMP)}")
    st = A.ds(f"ds_read_b128 {v(T + 4, 4)}, {v(TMP)} offset:16")
    A.ds(f"ds_read_b128 {v(PART, 4)}, {v(vCsR)}")
    cs = A.ds(f"ds_read_b128 {v(PART + 4, 4)}, {v(vCsR)} offset:16")
    A.wait_lg(st)
    A(f"v_pk_add_f32 {v(T, 2)}, {v(T, 2)}, {v(T + 2, 2)}")
    A(f"v_pk_add_f32 {v(T + 4, 2)}, {v(T + 4, 2)}, {v(T + 6, 2)}")
    A(f"v_pk_add_f32 {v(T, 2)}, {v(T, 2)}, {v(T + 4, 2)}")
    split_neg_mean_sigma(A, T, U, augB, vRs, LOG2E, True)
    A.wait_lg(cs)
    for o in colsum_ops(PART, augA, vBias):
        A(o)
    A(f"v_mfma_f32_32x32x16_bf16 {v(accE, 16)}, {v(augA, 4)}, {v(augB, 4)}, {v(accM, 16)}")
    A(f"v_xor_b32 {v(vCsW)}, 0x1800, {v(vCsW)}")
    A(f"v_xor_b32 {v(vCsR)}, 0x1800, {v(vCsR)}")
    A(f"s_mov_b32 {s(sRound)}, 1")
    act_off(sAct, "0")
    for q in range(4):
        A(f"v_add_u32 {v(vWrd + q)}, {P1}, {v(vWrd + q)}")
    A(f"s_cmp_eq_u32 {s(sP)}, {s(sOdd)}")
    A(f"s_cselect_b32 {s(sActive)}, 1, 0")
    A(f"s_mov_b32 {s(sBuf)}, {WA}")

    def epilogue_ops():
        o = []
        for h in range(2):
            E = accE + 8 * h
            for i in range(0, 8, 2):
                o.append(f"v_pk_mul_f32 {v(E + i, 2)}, {v(E + i, 2)}, {v(vRs - (vRs & 1), 2)} " +
                         ("op_sel:[0,1] op_sel_hi:[1,1]" if vRs & 1 else "op_sel_hi:[1,0]"))
            for i in range(8):
                o.append(f"v_exp_f32 {v(T + i)}, {v(E + i)}")
            for i in range(0, 8, 2):
                o.append(f"v_pk_fma_f32 {v(U + i, 2)}, {v(T + i, 2)}, {v(vHalf, 2)}, {v(vOne, 2)} op_sel_hi:[1,0,0]")
            for i in range(0, 8, 2):
                o.append(f"v_pk_fma_f32 {v(U + i, 2)}, {v(T + i, 2)}, {v(U + i, 2)}, {v(vOne, 2)} op_sel_hi:[1,1,0]")
            for i in range(8):
                o.append(f"v_rcp_f32 {v(U + i)}, {v(U + i)}")
            for i in range(0, 8, 2):
                o.append(f"v_pk_fma_f32 {v(E + i, 2)}, {v(E + i, 2)}, {v(U + i, 2)}, {v(E + i, 2)} neg_lo:[1,0,0] neg_hi:[1,0,0]")
            for i in range(4):
                o.append(f"v_cvt_pk_bf16_f32 {v(P + 4 * h + i)}, {v(E + 2 * i)}, {v(E + 2 * i + 1)}")
            o.append(("store", f"buffer_store_dwordx4 {v(P + 4 * h, 4)}, {v(vSt)}, {s(SRD_AO, 4)}, {s(sAct)} offen offset:{1024 * h}"))
        return o

    def emit_op(o):
        if isinstance(o, tuple):
            A.vmem(o[1])
        else:
            A(o)

    A.label("FFN_LOOP")
    A.reset_counts()
    A(f"s_cmp_eq_u32 {s(sRound)}, 3")
    A("s_cbranch_scc1 FFN_LAST")
    A(f"s_add_u32 {s(sT0)}, {s(sRound)}, 1")
    A(f"s_add_u32 {s(sT0)}, {s(sT0)}, {s(sOdd)}")
    A(f"s_and_b32 {s(sT0)}, {s(sT0)}, 3")
    A(f"s_sub_u32 {s(sT0)}, {s(sT0)}, {s(sOdd)}")
    A(f"s_lshl_b32 {s(sT0)}, {s(sT0)}, 7")
    A(f"s_add_u32 s66, {s(sWg)}, {s(sT0)}")
    A(f"s_add_u32 s68, {s(sWl)}, {s(sBuf)}")
    for c in range(7):
        dma(A, vWoff, SRD_W, 66, c * 64 * 3584, 68, 8192 * c)
    A("s_branch FFN_MAIN")
    A.label("FFN_LAST")
    A(f"s_cmp_eq_u32 {s(sActive)}, 0")
    A("s_cbranch_scc1 FFN_EPI")
    A.label("FFN_MAIN")
    A.reset_counts()
    order = [(c, 0) for c in range(7)] + [(c, q) for c in range(7) for q in range(1, 4)]
    DEPTH = 4
    rd = {}

    def wread(n):
        c, q = order[n]
        b = WB + 4 * (n % DEPTH)
        A.ds(f"ds_read_b64_tr_b16 {v(b, 2)}, {v(vWrd + q)} offset:{8192 * c}")
        rd[n] = A.ds(f"ds_read_b64_tr_b16 {v(b + 2, 2)}, {v(vWrd + q)} offset:{8192 * c + 512}")

    epi = epilogue_ops()
    A(f"v_mov_b32 {v(vCs)}, 0")
    for n in range(DEPTH - 1):
        wread(n)
    fill = [1] * 7 + [4] * 5 + [3] * 4 + [3] * 12
    ei = 0
    cs_ops = None
    for n in range(28):
        if n + DEPTH - 1 < 28:
            wread(n + DEPTH - 1)
        A.wait_lg(rd[n])
        c, q = order[n]
        b = WB + 4 * (n % DEPTH)
        cin = "0" if n == 0 else v(accM, 16)
        A(f"v_mfma_f32_32x32x16_bf16 {v(accM, 16)}, {v(b, 4)}, {v(X + 16 * c + 4 * q, 4)}, {cin}")
        if n < 7:
            for k in range(4):
                A(f"v_dot2_f32_bf16 {v(vCs)}, {v(b + k)}, {v(vOnes)}, {v(vCs)}")
        if n == 7:
            csw = A.ds(f"ds_write_b32 {v(vCsW)}, {v(vCs)}")
        if n == 12:
            A.wait_lg(csw)
            A("s_barrier")
            A.ds(f"ds_read_b128 {v(PART, 4)}, {v(vCsR)}")
            csr = A.ds(f"ds_read_b128 {v(PART + 4, 4)}, {v(vCsR)} offset:16")
        if n == 16:
            A.wait_lg(csr)
            cs_ops = colsum_ops(PART, augA, vBias + 1)
        k = fill[n]
        while k > 0 and ei < len(epi):
            emit_op(epi[ei])
            ei += 1
            k -= 1
        if cs_ops and n >= 16:
            for _ in range(2):
                if cs_ops:
                    A(cs_ops.pop(0))
    while ei < len(epi):
        emit_op(epi[ei])
        ei += 1
    assert not cs_ops
    A(f"v_mfma_f32_32x32x16_bf16 {v(accE, 16)}, {v(augA, 4)}, {v(augB, 4)}, {v(accM, 16)}")
    for k in range(1, 3):
        A(f"v_mov_b32 {v(vBias + k)}, {v(vBias + k + 1)}")
    A(f"v_xor_b32 {v(vCsW)}, 0x1800, {v(vCsW)}")
    A(f"v_xor_b32 {v(vCsR)}, 0x1800, {v(vCsR)}")
    act_off(sAct, s(sRound))
    A(f"s_cmp_eq_u32 {s(sRound)}, 3")
    A("s_cbranch_scc1 FFN_FIN")
    A(f"s_mov_b32 {s(sT1)}, {P1}")
    A(f"s_cmp_eq_u32 {s(sBuf)}, {WA}")
    A(f"s_cselect_b32 {s(sT0)}, {-P1 & 0xffffffff:#x}, {s(sT1)}")
    A(f"s_cselect_b32 {s(sBuf)}, {P1}, {WA}")
    for q in range(4):
        A(f"v_add_u32 {v(vWrd + q)}, {s(sT0)}, {v(vWrd + q)}")
    A(f"s_add_u32 {s(sRound)}, {s(sRound)}, 1")
    A("s_waitcnt vmcnt(2)")
    A("s_barrier")
    A("s_branch FFN_LOOP")
    A.label("FFN_EPI")
    A.reset_counts()
    for o in epilogue_ops():
        emit_op(o)
    A("s_barrier")
    A("s_endpgm")
    A.label("FFN_FIN")
    A.reset_counts()
    for o in epilogue_ops():
        emit_op(o)
    A("s_endpgm")


def gen_att(A):
    STAGE, XH, WQ = 43008, 16384, 18432
    MISC = 3 * STAGE
    STM, STH, CSP = MISC, MISC + 4096, MISC + 6144
    QSEC = 5120
    vXoff, vHoff, vWoff = 1, 2, 3
    vXrd, vHrd, vWrd = 4, 8, 12
    vDelta, vOnes, vSum, vSumH, vCs = 24, 25, 26, 28, 30
    acc = 36
    accH = acc + 48
    FB = 100
    TMP = 140
    sXg, sXl, sHg, sHl, sWg, sWl, sC, sStage, sHalo, sNext = 52, 53, 54, 55, 56, 57, 58, 59, 60, 61
    sSec1, sSec2 = 62, 63
    A.label("ATT")
    A.reset_counts()
    A(f"s_lshl_b32 {s(sT1)}, {s(sRB)}, 7")
    A(f"s_lshl_b32 {s(sT0)}, {s(sWAVE)}, 4")
    A(f"s_add_u32 {s(sXg)}, {s(sT1)}, {s(sT0)}")
    A(f"s_mul_i32 {s(sXg)}, {s(sXg)}, 896")
    A(f"s_lshl_b32 {s(sXl)}, {s(sWAVE)}, 11")
    A(f"s_lshl_b32 {s(sT0)}, {s(sWAVE)}, 1")
    A(f"s_add_u32 {s(sHg)}, {s(sT1)}, {s(sT0)}")
    A(f"s_sub_u32 {s(sHg)}, {s(sHg)}, 16")
    A(f"s_mul_i32 {s(sHg)}, {s(sHg)}, 896")
    A(f"s_cmp_eq_u32 {s(sRB)}, 0")
    A(f"s_cselect_b32 {s(sHg)}, {OOB}, {s(sHg)}")
    A(f"s_lshl_b32 {s(sHl)}, {s(sWAVE)}, 8")
    A(f"s_mul_i32 {s(sWg)}, {s(sWAVE)}, {8 * 2688}")
    A(f"s_mul_i32 {s(sT0)}, {s(sSEL)}, 112")
    A(f"s_add_u32 {s(sWg)}, {s(sWg)}, {s(sT0)}")
    A(f"s_lshl_b32 {s(sWl)}, {s(sWAVE)}, 10")
    x_dma_voff(A, vXoff, TMP, TMP + 1)
    A(f"s_and_b32 {s(sT0)}, {s(sWAVE)}, 3")
    A(f"s_add_u32 {s(sT0)}, {s(sT0)}, 4")
    A(f"v_and_b32 {v(TMP)}, 7, v0")
    A(f"v_xor_b32 {v(TMP)}, {s(sT0)}, {v(TMP)}")
    A(f"v_lshrrev_b32 {v(TMP + 1)}, 3, v0")
    A(f"v_mul_u32_u24 {v(TMP + 1)}, 896, {v(TMP + 1)}")
    A(f"v_lshl_add_u32 {v(vHoff)}, {v(TMP)}, 4, {v(TMP + 1)}")
    A(f"v_bfe_u32 {v(TMP)}, v0, 4, 1")
    A(f"v_lshlrev_b32 {v(TMP)}, 2, {v(TMP)}")
    A(f"v_and_b32 {v(TMP + 1)}, 7, v0")
    A(f"v_xor_b32 {v(TMP)}, {v(TMP)}, {v(TMP + 1)}")
    A(f"v_min_u32 {v(TMP)}, 6, {v(TMP)}")
    A(f"v_lshrrev_b32 {v(TMP + 1)}, 3, v0")
    A(f"v_mul_u32_u24 {v(TMP + 1)}, 2688, {v(TMP + 1)}")
    A(f"v_lshl_add_u32 {v(vWoff)}, {v(TMP)}, 4, {v(TMP + 1)}")
    A("s_waitcnt lgkmcnt(0)")
    srd(A, SRD_X, 4, X_BYTES)
    srd(A, SRD_W, 6, 448 * 1344 * 2)

    def chunk_dma(c_imm, lds_sgpr, lds_imm, gx, gh, gw):
        A(f"s_add_u32 s70, {s(sXl)}, {lds_sgpr}")
        A(f"s_add_u32 s71, {s(sHl)}, {lds_sgpr}")
        A(f"s_add_u32 s72, {s(sWl)}, {lds_sgpr}")
        dma(A, vXoff, SRD_X, gx, 128 * c_imm, 70, lds_imm)
        dma(A, vXoff, SRD_X, gx, 128 * c_imm + 7168, 70, lds_imm + 1024)
        A("s_mov_b64 exec, 0xffff")
        dma(A, vHoff, SRD_X, gh, 128 * c_imm, 71, lds_imm + XH)
        A("s_mov_b64 exec, -1")
        t = None
        for sec in range(3):
            t = dma(A, vWoff, SRD_W, gw, c_imm * 64 * 2688 + 896 * sec, 72, lds_imm + WQ + 8192 * sec)
        return t

    for c in range(3):
        chunk_dma(c, "0", STAGE * c, sXg, sHg, sWg)
    A(f"s_add_u32 {s(sXg)}, {s(sXg)}, {128 * 3}")
    A(f"s_add_u32 {s(sHg)}, {s(sHg)}, {128 * 3}")
    A(f"s_add_u32 {s(sWg)}, {s(sWg)}, {3 * 64 * 2688}")
    srd(A, SRD_AO, 16, AO_SIZE)
    A(f"s_add_u32 {s(sT0)}, {s(sWAVE)}, 2")
    A(f"s_and_b32 {s(sT0)}, {s(sT0)}, 7")
    A(f"s_cmp_lt_u32 {s(sT0)}, 4")
    A(f"s_cselect_b32 {s(sHalo)}, 1, 0")
    A(f"s_and_b32 {s(sT0)}, {s(sWAVE)}, 1")
    A(f"s_and_b32 {s(sT0)}, {s(sT0)}, {s(sHalo)}")
    A(f"s_add_u32 {s(sSec1)}, {s(sT0)}, 1")
    A(f"s_sub_u32 {s(sSec2)}, 3, {s(sSec1)}")
    x_read_addr(A, vXrd, TMP, TMP + 1, TMP + 2, "0")
    A(f"v_and_b32 {v(TMP)}, 7, v0")
    A(f"v_lshlrev_b32 {v(TMP)}, 1, {v(TMP)}")
    A(f"v_bfe_u32 {v(TMP + 1)}, v0, 4, 1")
    A(f"v_add_u32 {v(TMP)}, {v(TMP)}, {v(TMP + 1)}")
    A(f"v_lshlrev_b32 {v(TMP)}, 7, {v(TMP)}")
    A(f"v_and_b32 {v(TMP + 1)}, 3, v0")
    A(f"v_add_u32 {v(TMP + 1)}, 4, {v(TMP + 1)}")
    A(f"v_lshrrev_b32 {v(TMP + 2)}, 5, v0")
    A(f"s_lshl_b32 {s(sT0)}, {s(sIP)}, 1")
    A(f"v_add_u32 {v(TMP + 2)}, {s(sT0)}, {v(TMP + 2)}")
    A(f"v_xor_b32 {v(TMP + 1)}, {v(TMP + 1)}, {v(TMP + 2)}")
    A(f"v_lshl_add_u32 {v(TMP)}, {v(TMP + 1)}, 4, {v(TMP)}")
    A(f"v_add_u32 {v(vHrd)}, {XH}, {v(TMP)}")
    for q in range(1, 4):
        A(f"v_xor_b32 {v(vHrd + q)}, {32 * q}, {v(vHrd)}")
    A(f"s_mul_i32 {s(sT1)}, {s(sP)}, 56")
    tr_lane_part(A, TMP + 5, TMP, TMP + 1, s(sT1), 3)
    for sl in range(3):
        for q in range(4):
            A(f"s_xor_b32 {s(sT0)}, {s(sIP)}, {q}")
            A(f"s_lshl_b32 {s(sT0)}, {s(sT0)}, 11")
            if sl == 0:
                A(f"s_add_u32 {s(sT0)}, {s(sT0)}, {WQ}")
            else:
                A(f"s_lshl_b32 {s(sT1)}, {s(sSec1 if sl == 1 else sSec2)}, 13")
                A(f"s_add_u32 {s(sT0)}, {s(sT0)}, {s(sT1)}")
                A(f"s_add_u32 {s(sT0)}, {s(sT0)}, {WQ}")
            A(f"v_add_u32 {v(vWrd + 4 * sl + q)}, {s(sT0)}, {v(TMP + 5)}")
    A(f"v_mov_b32 {v(vOnes)}, {ONES:#x}")
    for r in (vSum, vSum + 1, vSumH, vSumH + 1, vCs, vCs + 1, vCs + 2):
        A(f"v_mov_b32 {v(r)}, 0")
    for r in range(64):
        A(f"v_mov_b32 {v(acc + r)}, 0")
    A(f"s_mov_b32 {s(sC)}, 0")
    A(f"s_mov_b32 {s(sStage)}, 0")
    A(f"s_cmp_eq_u32 {s(sHalo)}, 1")
    A("s_cbranch_scc1 ATT_LOOP_H")

    def loop(halo):
        L = "H" if halo else "N"
        A.label(f"ATT_LOOP_{L}")
        A.reset_counts()
        A(f"s_cmp_eq_u32 {s(sC)}, 0")
        A(f"s_cbranch_scc1 ATT_W12_{L}")
        A(f"s_cmp_eq_u32 {s(sC)}, 6")
        A(f"s_cbranch_scc1 ATT_W0_{L}")
        A("s_waitcnt vmcnt(6)")
        A(f"s_branch ATT_GO_{L}")
        A.label(f"ATT_W12_{L}")
        A("s_waitcnt vmcnt(12)")
        A(f"s_branch ATT_GO_{L}")
        A.label(f"ATT_W0_{L}")
        A("s_waitcnt vmcnt(0)")
        A.label(f"ATT_GO_{L}")
        A("s_barrier")
        A(f"s_sub_u32 {s(sT0)}, {s(sC)}, 1")
        A(f"s_cmp_gt_u32 {s(sT0)}, 3")
        A(f"s_cbranch_scc1 ATT_NOLD_{L}")
        A(f"s_add_u32 {s(sNext)}, {s(sStage)}, 2")
        A(f"s_cmp_ge_u32 {s(sNext)}, 3")
        A(f"s_cselect_b32 {s(sT0)}, 3, 0")
        A(f"s_sub_u32 {s(sNext)}, {s(sNext)}, {s(sT0)}")
        A(f"s_mul_i32 {s(sNext)}, {s(sNext)}, {STAGE}")
        chunk_dma(0, s(sNext), 0, sXg, sHg, sWg)
        A(f"s_add_u32 {s(sXg)}, {s(sXg)}, 128")
        A(f"s_add_u32 {s(sHg)}, {s(sHg)}, 128")
        A(f"s_add_u32 {s(sWg)}, {s(sWg)}, {64 * 2688}")
        A.label(f"ATT_NOLD_{L}")
        A.reset_counts()
        rd = {}

        def reads(q):
            b = FB + 20 * (q & 1)
            A.ds(f"ds_read_b128 {v(b, 4)}, {v(vXrd + q)}")
            if halo:
                A.ds(f"ds_read_b128 {v(b + 4, 4)}, {v(vHrd + q)}")
            for sl in range(3):
                A.ds(f"ds_read_b64_tr_b16 {v(b + 8 + 4 * sl, 2)}, {v(vWrd + 4 * sl + q)}")
                rd[q] = A.ds(f"ds_read_b64_tr_b16 {v(b + 10 + 4 * sl, 2)}, {v(vWrd + 4 * sl + q)} offset:512")

        reads(0)
        for q in range(4):
            b = FB + 20 * (q & 1)
            if q == 0:
                reads(1)
            A.wait_lg(rd[q])
            for sl in range(3):
                A(f"v_mfma_f32_32x32x16_bf16 {v(acc + 16 * sl, 16)}, {v(b + 8 + 4 * sl, 4)}, {v(b, 4)}, {v(acc + 16 * sl, 16)}")
            if halo:
                A(f"v_mfma_f32_32x32x16_bf16 {v(accH, 16)}, {v(b + 12, 4)}, {v(b + 4, 4)}, {v(accH, 16)}")
            if q in (0, 2):
                for k in range(4):
                    A(f"v_dot2_f32_bf16 {v(vSum)}, {v(b + k)}, {v(vOnes)}, {v(vSum)}")
                    A(f"v_dot2_f32_bf16 {v(vSum + 1)}, {v(b + k)}, {v(b + k)}, {v(vSum + 1)}")
            if q == 0:
                for sl in range(3):
                    for k in range(4):
                        A(f"v_dot2_f32_bf16 {v(vCs + sl)}, {v(b + 8 + 4 * sl + k)}, {v(vOnes)}, {v(vCs + sl)}")
                if halo:
                    for k in range(4):
                        A(f"v_dot2_f32_bf16 {v(vSumH)}, {v(b + 4 + k)}, {v(vOnes)}, {v(vSumH)}")
                        A(f"v_dot2_f32_bf16 {v(vSumH + 1)}, {v(b + 4 + k)}, {v(b + 4 + k)}, {v(vSumH + 1)}")
            if q + 2 < 4:
                reads(q + 2)
        A(f"s_add_u32 {s(sStage)}, {s(sStage)}, 1")
        A(f"s_cmp_eq_u32 {s(sStage)}, 3")
        A(f"s_mov_b32 {s(sT1)}, {STAGE}")
        A(f"s_cselect_b32 {s(sT0)}, {(-2 * STAGE) & 0xffffffff:#x}, {s(sT1)}")
        A(f"s_cselect_b32 {s(sStage)}, 0, {s(sStage)}")
        A(f"v_mov_b32 {v(vDelta)}, {s(sT0)}")
        for r in range(4):
            A(f"v_add_u32 {v(vXrd + r)}, {v(vDelta)}, {v(vXrd + r)}")
        if halo:
            for r in range(4):
                A(f"v_add_u32 {v(vHrd + r)}, {v(vDelta)}, {v(vHrd + r)}")
        for r in range(12):
            A(f"v_add_u32 {v(vWrd + r)}, {v(vDelta)}, {v(vWrd + r)}")
        A(f"s_add_u32 {s(sC)}, {s(sC)}, 1")
        A(f"s_cmp_lt_u32 {s(sC)}, 7")
        A(f"s_cbranch_scc1 ATT_LOOP_{L}")

    loop(False)
    A("s_branch ATT_POST")
    loop(True)
    A.label("ATT_POST")
    A.reset_counts()
    R = 4
    A(f"v_and_b32 {v(R)}, 31, v0")
    A(f"v_lshrrev_b32 {v(R + 1)}, 5, v0")
    A(f"v_lshlrev_b32 {v(R + 2)}, 5, {v(R)}")
    A(f"s_lshl_b32 {s(sT0)}, {s(sI)}, 10")
    A(f"s_add_u32 {s(sT0)}, {s(sT0)}, {STM}")
    A(f"v_add_u32 {v(R + 3)}, {s(sT0)}, {v(R + 2)}")
    A(f"s_lshl_b32 {s(sT0)}, {s(sP)}, 1")
    A(f"v_add_u32 {v(R + 4)}, {s(sT0)}, {v(R + 1)}")
    A(f"v_lshl_add_u32 {v(R + 4)}, {v(R + 4)}, 3, {v(R + 3)}")
    A.ds(f"ds_write_b64 {v(R + 4)}, {v(vSum, 2)}")
    A(f"v_lshlrev_b32 {v(R + 5)}, 6, {v(R)}")
    A(f"v_add_u32 {v(R + 5)}, {STH}, {v(R + 5)}")
    A(f"s_and_b32 {s(sT0)}, {s(sWAVE)}, 1")
    A(f"s_lshl_b32 {s(sT1)}, {s(sP)}, 1")
    A(f"s_add_u32 {s(sT0)}, {s(sT0)}, {s(sT1)}")
    A(f"s_lshl_b32 {s(sT0)}, {s(sT0)}, 1")
    A(f"v_add_u32 {v(R + 4)}, {s(sT0)}, {v(R + 1)}")
    A(f"v_lshl_add_u32 {v(R + 4)}, {v(R + 4)}, 3, {v(R + 5)}")
    A(f"s_cmp_eq_u32 {s(sHalo)}, 0")
    A("s_cbranch_scc1 ATT_NOHS")
    A(f"ds_write_b64 {v(R + 4)}, {v(vSumH, 2)}")
    A.label("ATT_NOHS")
    A(f"s_mul_i32 {s(sT0)}, {s(sP)}, 3072")
    A(f"s_add_u32 {s(sT0)}, {s(sT0)}, {CSP}")
    A(f"v_add_u32 {v(R + 6)}, {s(sT0)}, {v(R + 2)}")
    A(f"s_lshl_b32 {s(sT0)}, {s(sSec1)}, 10")
    A(f"v_add_u32 {v(R + 7)}, {s(sT0)}, {v(R + 6)}")
    A(f"s_lshl_b32 {s(sT0)}, {s(sSec2)}, 10")
    A(f"v_add_u32 {v(R + 8)}, {s(sT0)}, {v(R + 6)}")
    A(f"s_lshl_b32 {s(sT0)}, {s(sI)}, 1")
    A(f"v_add_u32 {v(R + 9)}, {s(sT0)}, {v(R + 1)}")
    A(f"v_lshlrev_b32 {v(R + 9)}, 2, {v(R + 9)}")
    for sl in range(3):
        A(f"v_add_u32 {v(R + 10)}, {v(R + 6 + sl)}, {v(R + 9)}")
        A(f"ds_write_b32 {v(R + 10)}, {v(vCs + sl)}")
    A("s_waitcnt lgkmcnt(0)")
    A("s_barrier")
    A.reset_counts()
    PART, augA, augB, augBH = 100, 124, 136, 140
    ST, UT = 144, 160
    vRs, vRsH, vRsQ = 24, 26, 28
    A.ds(f"ds_read_b128 {v(ST, 4)}, {v(R + 3)}")
    st = A.ds(f"ds_read_b128 {v(ST + 4, 4)}, {v(R + 3)} offset:16")
    for k in range(4):
        sth = A.ds(f"ds_read_b128 {v(ST + 8 + 4 * k, 4)}, {v(R + 5)} offset:{16 * k}") if k < 2 else None
    csr = []
    for sl in range(3):
        A.ds(f"ds_read_b128 {v(PART + 8 * sl, 4)}, {v(R + 6 + sl)}")
        csr.append(A.ds(f"ds_read_b128 {v(PART + 8 * sl + 4, 4)}, {v(R + 6 + sl)} offset:16"))
    A.ds(f"ds_read_b128 {v(UT + 8, 4)}, {v(R + 5)} offset:32")
    sth = A.ds(f"ds_read_b128 {v(UT + 12, 4)}, {v(R + 5)} offset:48")
    A.wait_lg(st)
    A(f"v_pk_add_f32 {v(ST, 2)}, {v(ST, 2)}, {v(ST + 2, 2)}")
    A(f"v_pk_add_f32 {v(ST + 4, 2)}, {v(ST + 4, 2)}, {v(ST + 6, 2)}")
    A(f"v_pk_add_f32 {v(ST, 2)}, {v(ST, 2)}, {v(ST + 4, 2)}")
    split_neg_mean_sigma(A, ST, UT, augB, vRs, None, False)
    A(f"v_mul_f32 {v(vRsQ)}, {fbits(28 ** -0.5 * 1.4426950408889634):#x}, {v(vRs)}")
    for sl in range(3):
        A.wait_lg(csr[sl])
        for o in colsum_ops(PART + 8 * sl, augA + 4 * sl, None):
            A(o)
        A(f"v_mov_b32 {v(augA + 4 * sl + 2)}, 0")
        A(f"v_mov_b32 {v(augA + 4 * sl + 3)}, 0")
    for sl in range(3):
        A(f"v_mfma_f32_32x32x16_bf16 {v(acc + 16 * sl, 16)}, {v(augA + 4 * sl, 4)}, {v(augB, 4)}, {v(acc + 16 * sl, 16)}")
    A.wait_lg(sth)
    A(f"s_cmp_eq_u32 {s(sHalo)}, 0")
    A("s_cbranch_scc1 ATT_NOHA")
    A(f"v_pk_add_f32 {v(ST + 8, 2)}, {v(ST + 8, 2)}, {v(ST + 10, 2)}")
    A(f"v_pk_add_f32 {v(ST + 12, 2)}, {v(ST + 12, 2)}, {v(ST + 14, 2)}")
    A(f"v_pk_add_f32 {v(UT + 8, 2)}, {v(UT + 8, 2)}, {v(UT + 10, 2)}")
    A(f"v_pk_add_f32 {v(UT + 12, 2)}, {v(UT + 12, 2)}, {v(UT + 14, 2)}")
    A(f"v_pk_add_f32 {v(ST + 8, 2)}, {v(ST + 8, 2)}, {v(ST + 12, 2)}")
    A(f"v_pk_add_f32 {v(UT + 8, 2)}, {v(UT + 8, 2)}, {v(UT + 12, 2)}")
    A(f"v_pk_add_f32 {v(ST + 8, 2)}, {v(ST + 8, 2)}, {v(UT + 8, 2)}")
    split_neg_mean_sigma(A, ST + 8, UT, augBH, vRsH, None, False)
    A(f"v_mfma_f32_32x32x16_bf16 {v(accH, 16)}, {v(augA + 4, 4)}, {v(augBH, 4)}, {v(accH, 16)}")
    A.label("ATT_NOHA")
    W0, W1 = 4, 5
    A(f"v_and_b32 {v(6)}, 15, v0")
    A(f"v_lshrrev_b32 {v(7)}, 2, {v(6)}")
    A(f"v_and_b32 {v(8)}, 1, {v(7)}")
    A(f"v_lshlrev_b32 {v(8)}, 1, {v(8)}")
    A(f"v_xor_b32 {v(7)}, {v(7)}, {v(8)}")
    A(f"v_lshrrev_b32 {v(8)}, 5, v0")
    A(f"v_lshlrev_b32 {v(8)}, 1, {v(8)}")
    A(f"v_xor_b32 {v(8)}, {v(8)}, {v(7)}")
    A(f"v_lshlrev_b32 {v(8)}, 4, {v(8)}")
    A(f"v_lshl_add_u32 {v(8)}, {v(6)}, 6, {v(8)}")
    A(f"v_bfe_u32 {v(9)}, v0, 4, 1")
    A(f"v_mul_u32_u24 {v(9)}, {QSEC}, {v(9)}")
    A(f"v_add_u32 {v(8)}, {v(8)}, {v(9)}")
    A(f"s_mul_i32 {s(sT0)}, {s(sP)}, {6 * QSEC}")
    A(f"s_add_u32 {s(sT1)}, {s(sI)}, 1")
    A(f"s_lshl_b32 {s(sT1)}, {s(sT1)}, 10")
    A(f"s_add_u32 s70, {s(sT0)}, {s(sT1)}")
    A(f"s_mul_i32 s71, {s(sSec1)}, {2 * QSEC}")
    A(f"s_mul_i32 s72, {s(sSec2)}, {2 * QSEC}")
    A(f"s_add_u32 s73, s71, {s(sT0)}")
    A("s_add_u32 s71, s71, s70")
    A("s_add_u32 s72, s72, s70")

    def put(accb, scale, sbase, pk):
        sel = "op_sel_hi:[1,0]"
        for i in range(0, 16, 2):
            A(f"v_pk_mul_f32 {v(accb + i, 2)}, {v(accb + i, 2)}, {v(scale, 2)} {sel}")
        for i in range(8):
            A(f"v_cvt_pk_bf16_f32 {v(pk + i)}, {v(accb + 2 * i)}, {v(accb + 2 * i + 1)}")
        A("s_mov_b32 exec_lo, 0")
        A(f"v_mov_b32 {v(pk + 6)}, 0")
        A(f"v_mov_b32 {v(pk + 7)}, 0")
        A("s_mov_b32 exec_lo, -1")
        A(f"v_add_u32 {v(W0)}, {sbase}, {v(8)}")
        A(f"v_xor_b32 {v(W1)}, 16, {v(W0)}")
        A(f"ds_write_b128 {v(W0)}, {v(pk, 4)}")
        A(f"ds_write_b128 {v(W1)}, {v(pk + 4, 4)}")

    put(acc, vRsQ, "s70", 100)
    put(acc + 16, vRs, "s71", 108)
    put(acc + 32, vRs, "s72", 116)
    A(f"s_cmp_eq_u32 {s(sHalo)}, 0")
    A("s_cbranch_scc1 ATT_NOHP")
    put(accH, vRsH, "s73", 124)
    A.label("ATT_NOHP")
    A("s_waitcnt lgkmcnt(0)")
    A("s_barrier")
    A.reset_counts()
    bC, bP = 12, 16
    A(f"v_lshrrev_b32 {v(9)}, 4, v0")
    A(f"v_lshlrev_b32 {v(10)}, 2, {v(9)}")
    A(f"v_sub_u32 {v(10)}, {v(6)}, {v(10)}")
    A(f"v_mov_b32 {v(11)}, {fbits(-1e9):#x}")
    A(f"s_or_b32 {s(sT0)}, {s(sRB)}, {s(sI)}")
    A(f"s_cmp_eq_u32 {s(sT0)}, 0")
    A(f"s_cselect_b32 s74, 1000, 0")
    for r in range(4):
        A(f"v_subrev_u32 {v(20)}, {r}, {v(10)}")
        A(f"v_cmp_gt_u32 vcc, 8, {v(20)}")
        A(f"v_cndmask_b32 {v(bC + r)}, {v(11)}, 0, vcc")
        A(f"v_add_u32 {v(20)}, s74, {v(20)}")
        A(f"v_cmp_gt_i32 vcc, -8, {v(20)}")
        A(f"v_cndmask_b32 {v(bP + r)}, {v(11)}, 0, vcc")
    A(f"v_xor_b32 {v(20)}, {v(9)}, {v(7)}")
    A(f"v_lshlrev_b32 {v(20)}, 4, {v(20)}")
    A(f"v_lshl_add_u32 {v(20)}, {v(6)}, 6, {v(20)}")
    A(f"s_mul_i32 {s(sT0)}, {s(sP)}, {6 * QSEC}")
    A(f"s_lshl_b32 {s(sT1)}, {s(sI)}, 10")
    A(f"s_add_u32 s75, {s(sT0)}, {s(sT1)}")
    A(f"v_add_u32 {v(20)}, s75, {v(20)}")
    A(f"v_and_b32 {v(21)}, 1, {v(9)}")
    A(f"v_lshlrev_b32 {v(21)}, 1, {v(21)}")
    A(f"v_xor_b32 {v(21)}, {v(21)}, {v(9)}")
    A(f"v_bfe_u32 {v(22)}, v0, 1, 1")
    A(f"v_xor_b32 {v(21)}, {v(21)}, {v(22)}")
    A(f"v_lshlrev_b32 {v(21)}, 4, {v(21)}")
    A(f"v_and_b32 {v(22)}, 1, v0")
    A(f"v_lshl_add_u32 {v(21)}, {v(22)}, 3, {v(21)}")
    A(f"v_lshrrev_b32 {v(22)}, 2, {v(6)}")
    A(f"v_lshl_add_u32 {v(22)}, {v(9)}, 2, {v(22)}")
    A(f"v_lshl_add_u32 {v(21)}, {v(22)}, 6, {v(21)}")
    A(f"v_add_u32 {v(21)}, s75, {v(21)}")
    A(f"v_xor_b32 {v(22)}, 32, {v(21)}")
    A(f"v_lshrrev_b32 {v(23)}, 1, {v(9)}")
    A(f"v_lshlrev_b32 {v(23)}, 10, {v(23)}")
    A(f"v_and_b32 {v(24)}, 1, {v(9)}")
    A(f"v_lshl_add_u32 {v(23)}, {v(24)}, 9, {v(23)}")
    A(f"v_lshl_add_u32 {v(23)}, {v(6)}, 4, {v(23)}")
    A(f"s_lshl_b32 {s(sT0)}, {s(sRB)}, 2")
    A(f"s_add_u32 {s(sT0)}, {s(sT0)}, {s(sI)}")
    A(f"s_mul_i32 {s(sT0)}, {s(sT0)}, {NKS}")
    A(f"s_lshl_b32 {s(sT1)}, {s(sSEL)}, 1")
    A(f"s_add_u32 {s(sT1)}, {s(sT1)}, {s(sP)}")
    A(f"s_lshl_b32 {s(sT1)}, {s(sT1)}, 1")
    A(f"s_add_u32 {s(sT0)}, {s(sT0)}, {s(sT1)}")
    A(f"s_lshl_b32 s76, {s(sT0)}, 10")
    B = {}
    for par in range(2):
        b = 40 + 60 * par
        Qf, Kp, Kc, Vf, Sp, Sc, M, M2, Pf, O = b, b + 4, b + 8, b + 12, b + 20, b + 24, b + 28, b + 30, b + 32, b + 36
        B[par] = (Qf, Kp, Kc, Vf, Sp, Sc, M, M2, Pf, O)
        po = par * QSEC
        A.ds(f"ds_read_b128 {v(Qf, 4)}, {v(20)} offset:{po + 1024}")
        A.ds(f"ds_read_b128 {v(Kp, 4)}, {v(20)} offset:{po + 2 * QSEC}")
        B[(par, "k")] = A.ds(f"ds_read_b128 {v(Kc, 4)}, {v(20)} offset:{po + 2 * QSEC + 1024}")
    for par in range(2):
        Qf, Kp, Kc, Vf, Sp, Sc, M, M2, Pf, O = B[par]
        po = par * QSEC + 4 * QSEC
        for dt in range(2):
            A.ds(f"ds_read_b64_tr_b16 {v(Vf + 4 * dt, 2)}, {v(21 + dt)} offset:{po}")
            B[(par, "v")] = A.ds(f"ds_read_b64_tr_b16 {v(Vf + 4 * dt + 2, 2)}, {v(21 + dt)} offset:{po + 1024}")
    for par in range(2):
        Qf, Kp, Kc, Vf, Sp, Sc, M, M2, Pf, O = B[par]
        A.wait_lg(B[(par, "k")])
        A(f"v_mfma_f32_16x16x32_bf16 {v(Sp, 4)}, {v(Kp, 4)}, {v(Qf, 4)}, {v(bP, 4)}")
        A(f"v_mfma_f32_16x16x32_bf16 {v(Sc, 4)}, {v(Kc, 4)}, {v(Qf, 4)}, {v(bC, 4)}")
    steps = {0: [], 1: []}
    for par in range(2):
        Qf, Kp, Kc, Vf, Sp, Sc, M, M2, Pf, O = B[par]
        o = steps[par]
        o.append(f"v_max3_f32 {v(M)}, {v(Sp)}, {v(Sp + 1)}, {v(Sp + 2)}")
        o.append(f"v_max3_f32 {v(M + 1)}, {v(Sc)}, {v(Sc + 1)}, {v(Sc + 2)}")
        o.append(f"v_max3_f32 {v(M)}, {v(M)}, {v(Sp + 3)}, {v(Sc + 3)}")
        o.append(f"v_max_f32 {v(M)}, {v(M)}, {v(M + 1)}")
        o.append(f"v_mov_b32 {v(M + 1)}, {v(M)}")
        o.append(f"v_permlane32_swap_b32 {v(M)}, {v(M + 1)}")
        o.append(f"v_max_f32 {v(M)}, {v(M)}, {v(M + 1)}")
        o.append(f"v_mov_b32 {v(M + 1)}, {v(M)}")
        o.append(f"v_permlane16_swap_b32 {v(M)}, {v(M + 1)}")
        o.append(f"v_max_f32 {v(M)}, {v(M)}, {v(M + 1)}")
        for i in range(0, 8, 2):
            o.append(f"v_pk_add_f32 {v(Sp + i, 2)}, {v(Sp + i, 2)}, {v(M, 2)} op_sel_hi:[1,0] neg_lo:[0,1] neg_hi:[0,1]")
        for i in range(8):
            o.append(f"v_exp_f32 {v(Sp + i)}, {v(Sp + i)}")
        for i in range(4):
            o.append(f"v_cvt_pk_bf16_f32 {v(Pf + i)}, {v(Sp + 2 * i)}, {v(Sp + 2 * i + 1)}")
        for dt in range(2):
            o.append(("lg", B[(par, "v")]))
            o.append(f"v_mfma_f32_16x16x32_bf16 {v(O + 4 * dt, 4)}, {v(Vf + 4 * dt, 4)}, {v(Pf, 4)}, 0")
        o.append(f"v_pk_add_f32 {v(Sp, 2)}, {v(Sp, 2)}, {v(Sp + 2, 2)}")
        o.append(f"v_pk_add_f32 {v(Sp + 4, 2)}, {v(Sp + 4, 2)}, {v(Sp + 6, 2)}")
        o.append(f"v_pk_add_f32 {v(Sp, 2)}, {v(Sp, 2)}, {v(Sp + 4, 2)}")
        o.append(f"v_add_f32 {v(M2)}, {v(Sp)}, {v(Sp + 1)}")
        o.append(f"v_mov_b32 {v(M2 + 1)}, {v(M2)}")
        o.append(f"v_permlane32_swap_b32 {v(M2)}, {v(M2 + 1)}")
        o.append(f"v_add_f32 {v(M2)}, {v(M2)}, {v(M2 + 1)}")
        o.append(f"v_mov_b32 {v(M2 + 1)}, {v(M2)}")
        o.append(f"v_permlane16_swap_b32 {v(M2)}, {v(M2 + 1)}")
        o.append(f"v_add_f32 {v(M2)}, {v(M2)}, {v(M2 + 1)}")
        o.append(f"v_rcp_f32 {v(M2)}, {v(M2)}")
        for i in range(0, 8, 2):
            o.append(f"v_pk_mul_f32 {v(O + i, 2)}, {v(O + i, 2)}, {v(M2, 2)} op_sel_hi:[1,0]")
        for i in range(4):
            o.append(f"v_cvt_pk_bf16_f32 {v(Pf + i)}, {v(O + 2 * i)}, {v(O + 2 * i + 1)}")
        o.append(("st", f"buffer_store_dwordx4 {v(Pf, 4)}, {v(23)}, {s(SRD_AO, 4)}, s76 offen offset:{256 * par}"))
    for x0, x1 in zip(steps[0], steps[1]):
        for x in (x0, x1):
            if isinstance(x, tuple):
                if x[0] == "lg":
                    A.wait_lg(x[1])
                else:
                    A.vmem(x[1])
            else:
                A(x)
    A("s_endpgm")


def gen_k1():
    A = Asm()
    A.label(K1)
    A("s_cmp_ge_u32 s2, 256")
    A("s_cbranch_scc1 K1_END")
    A("s_load_dwordx4 s[4:7], s[0:1], 0")
    A("s_load_dwordx2 s[8:9], s[0:1], 16")
    A("s_load_dwordx4 s[12:15], s[0:1], 32")
    A("s_load_dwordx2 s[10:11], s[0:1], 48")
    A("s_load_dwordx2 s[16:17], s[0:1], 72")
    A("v_lshrrev_b32 v1, 6, v0")
    A("v_and_b32 v0, 63, v0")
    A(f"v_readfirstlane_b32 {s(sWAVE)}, v1")
    A("s_and_b32 s18, s2, 7")
    A("s_lshr_b32 s19, s2, 3")
    A(f"s_lshr_b32 {s(sRB)}, s18, 2")
    A(f"s_lshl_b32 {s(sRB)}, {s(sRB)}, 3")
    A(f"s_and_b32 {s(sT0)}, s19, 7")
    A(f"s_add_u32 {s(sRB)}, {s(sRB)}, {s(sT0)}")
    A("s_and_b32 s18, s18, 3")
    A(f"s_lshl_b32 {s(sSEL)}, s18, 1")
    A("s_lshr_b32 s19, s19, 3")
    A(f"s_and_b32 {s(sT0)}, s19, 1")
    A(f"s_add_u32 {s(sSEL)}, {s(sSEL)}, {s(sT0)}")
    A(f"s_and_b32 {s(sI)}, {s(sWAVE)}, 3")
    A(f"s_lshr_b32 {s(sP)}, {s(sWAVE)}, 2")
    A(f"s_xor_b32 {s(sIP)}, {s(sI)}, {s(sP)}")
    A("s_cmp_ge_u32 s19, 2")
    A("s_cbranch_scc1 FFN")
    gen_att(A)
    gen_ffn(A)
    A.label("K1_END")
    A("s_endpgm")
    return A.lines
```

```python
import sys
from asmgen import Asm, pad_hazards, render

NAME = "recurrent_scan__sliding_local_dilated__dense_activation_mish__prompt"
K1 = NAME + "_kernel"
K2 = NAME + "_k2_kernel"

S, D, F = 2048, 448, 1792
NKS = 144
AO_SIZE = 64 * NKS * 1024
WP_OFF = AO_SIZE
WP_SIZE = 7 * NKS * 2 * 1024
X_BYTES = S * D * 2
LN2 = 0x3F317218
LOG2E = 0x3FB8AA3B


def v(i, n=1):
    return f"v{i}" if n == 1 else f"v[{i}:{i + n - 1}]"


def a(i, n=1):
    return f"a{i}" if n == 1 else f"a[{i}:{i + n - 1}]"


def s(i, n=1):
    return f"s{i}" if n == 1 else f"s[{i}:{i + n - 1}]"


def srd(A, dst, ptr, size, off=0):
    if off:
        A(f"s_add_u32 {s(dst)}, {s(ptr)}, {off}")
        A(f"s_addc_u32 {s(dst + 1)}, {s(ptr + 1)}, 0")
    else:
        A(f"s_mov_b32 {s(dst)}, {s(ptr)}")
        A(f"s_mov_b32 {s(dst + 1)}, {s(ptr + 1)}")
    A(f"s_mov_b32 {s(dst + 2)}, {size}")
    A(f"s_mov_b32 {s(dst + 3)}, 0x20000")


def gen_k2():
    A = Asm()
    SRD_AO, SRD_WP, SRD_X, SRD_O = 12, 16, 20, 24
    sW, sA0, sA1, sX0, sX1 = 28, 29, 30, 31, 32
    WIN = 15
    WB = 16
    XR = 2
    A.label(K2)
    A("s_cmp_ge_u32 s2, 224")
    A("s_cbranch_scc1 K2_END")
    A("s_load_dwordx2 s[4:5], s[0:1], 0")
    A("s_load_dwordx2 s[6:7], s[0:1], 56")
    A("s_load_dwordx2 s[8:9], s[0:1], 72")
    A("v_lshrrev_b32 v10, 6, v0")
    A("v_and_b32 v0, 63, v0")
    A("v_readfirstlane_b32 s3, v10")
    A("v_lshlrev_b32 v1, 4, v0")
    A("s_and_b32 s33, s2, 7")
    A("s_lshr_b32 s34, s2, 3")
    A("s_mul_i32 s35, s34, 37")
    A("s_lshr_b32 s35, s35, 8")
    A("s_mul_i32 s36, s35, 7")
    A("s_sub_u32 s36, s34, s36")
    A("s_lshl_b32 s33, s33, 2")
    A("s_add_u32 s35, s33, s35")
    A("s_mul_i32 s37, s3, 37")
    A("s_cmp_eq_u32 s3, 0")
    A("s_cselect_b32 s38, 5, 0")
    A("s_cmp_ge_u32 s3, 2")
    A("s_cselect_b32 s39, 4, 5")
    A("s_sub_u32 s37, s37, s39")
    A("s_add_u32 s37, s37, s38")
    A(f"s_mul_i32 {s(sA0)}, s35, {2 * NKS}")
    A(f"s_add_u32 {s(sA0)}, {s(sA0)}, s37")
    A(f"s_lshl_b32 {s(sA0)}, {s(sA0)}, 10")
    A(f"s_add_u32 {s(sA1)}, {s(sA0)}, {NKS * 1024}")
    A(f"s_mul_i32 {s(sW)}, s36, {NKS}")
    A(f"s_add_u32 {s(sW)}, {s(sW)}, s37")
    A(f"s_lshl_b32 {s(sW)}, {s(sW)}, 11")
    A("s_lshl_b32 s40, s35, 6")
    A("s_lshl_b32 s41, s3, 4")
    A("s_add_u32 s40, s40, s41")
    A(f"s_mul_i32 {s(sX0)}, s40, 896")
    A("s_lshl_b32 s41, s36, 7")
    A(f"s_add_u32 {s(sX0)}, {s(sX0)}, s41")
    A(f"s_add_u32 {s(sX1)}, {s(sX0)}, {8 * 896}")
    A("v_lshrrev_b32 v11, 3, v0")
    A("v_and_b32 v12, 7, v0")
    A("v_mul_u32_u24 v10, 896, v11")
    A("v_lshl_add_u32 v10, v12, 4, v10")
    A("s_waitcnt lgkmcnt(0)")
    srd(A, SRD_AO, 8, AO_SIZE)
    srd(A, SRD_WP, 8, WP_SIZE, WP_OFF)
    srd(A, SRD_X, 4, X_BYTES)
    srd(A, SRD_O, 6, X_BYTES)
    A("s_cmp_eq_u32 s3, 0")
    A("s_cbranch_scc1 K2_W0")
    A("s_cmp_eq_u32 s3, 1")
    A("s_cbranch_scc1 K2_W1")

    def stream(n):
        A.reset_counts()
        st = {"a": 0, "w": 0}
        toks = {}

        def issue(k):
            base = WB + 16 * (k % WIN)
            oa = k * 1024 - st["a"]
            if oa > 3072:
                A(f"s_add_u32 {s(sA0)}, {s(sA0)}, {oa}")
                A(f"s_add_u32 {s(sA1)}, {s(sA1)}, {oa}")
                st["a"] += oa
                oa = 0
            ow = k * 2048 - st["w"]
            if ow + 1024 > 3072:
                A(f"s_add_u32 {s(sW)}, {s(sW)}, {ow}")
                st["w"] += ow
                ow = 0
            A.vmem(f"buffer_load_dwordx4 {v(base, 4)}, v1, {s(SRD_AO, 4)}, {s(sA0)} offen offset:{oa}")
            A.vmem(f"buffer_load_dwordx4 {v(base + 8, 4)}, v1, {s(SRD_WP, 4)}, {s(sW)} offen offset:{ow}")
            A.vmem(f"buffer_load_dwordx4 {v(base + 4, 4)}, v1, {s(SRD_AO, 4)}, {s(sA1)} offen offset:{oa}")
            toks[k] = A.vmem(f"buffer_load_dwordx4 {v(base + 12, 4)}, v1, {s(SRD_WP, 4)}, {s(sW)} offen offset:{ow + 1024}")

        issue(0)
        A.vmem(f"buffer_load_dwordx4 {v(XR, 4)}, v10, {s(SRD_X, 4)}, {s(sX0)} offen")
        A.vmem(f"buffer_load_dwordx4 {v(XR + 4, 4)}, v10, {s(SRD_X, 4)}, {s(sX1)} offen")
        for k in range(1, min(WIN, n)):
            issue(k)
        for k in range(n):
            base = WB + 16 * (k % WIN)
            A.wait_vm(toks[k])
            for th in range(2):
                for ch in range(2):
                    acc = a(16 * (2 * th + ch), 16)
                    c = "0" if k == 0 else acc
                    A(f"v_mfma_f32_32x32x16_bf16 {acc}, {v(base + 8 + 4 * ch, 4)}, {v(base + 4 * th, 4)}, {c}")
            if k + WIN < n:
                issue(k + WIN)

    stream(37)
    A("s_branch K2_RED")
    A.label("K2_W0")
    stream(32)
    A("s_branch K2_RED")
    A.label("K2_W1")
    stream(38)
    A.label("K2_RED")
    A.reset_counts()
    A("v_and_b32 v11, 15, v0")
    A("v_lshlrev_b32 v11, 1, v11")
    A("v_bfe_u32 v12, v0, 4, 1")
    A("v_add_u32 v11, v11, v12")
    A("v_lshlrev_b32 v11, 8, v11")
    A("v_lshrrev_b32 v12, 5, v0")
    A("v_and_b32 v13, 7, v0")
    A("v_xor_b32 v12, v12, v13")
    A("v_lshl_add_u32 v11, v12, 4, v11")
    A("s_lshl_b32 s41, s3, 14")
    A("v_add_u32 v16, s41, v11")
    for g in range(1, 4):
        A(f"v_xor_b32 v{16 + g}, {32 * g}, v16")
    for th in range(2):
        for ch in range(2):
            for g in range(4):
                A.ds(f"ds_write_b128 v{16 + g}, {a(16 * (2 * th + ch) + 4 * g, 4)} offset:{th * 8192 + ch * 128}")
    A("v_lshrrev_b32 v11, 3, v0")
    A("v_and_b32 v12, 7, v0")
    A("v_lshlrev_b32 v12, 1, v12")
    A("v_lshrrev_b32 v13, 1, v11")
    A("v_xor_b32 v12, v12, v13")
    A("v_lshlrev_b32 v12, 4, v12")
    A("v_lshl_add_u32 v12, v11, 8, v12")
    A("s_lshl_b32 s41, s3, 12")
    A("v_add_u32 v20, s41, v12")
    A("v_xor_b32 v21, 16, v20")
    A("v_xor_b32 v22, 64, v20")
    A("v_xor_b32 v23, 80, v20")
    A(f"v_mov_b32 v24, {LN2:#x}")
    A("v_mov_b32 v26, 1.0")
    A.wait_lg_all()
    A("s_barrier")
    rd = {}
    for j in range(2):
        for src in range(4):
            for e in range(2):
                b = 32 + 40 * j + 8 * src + 4 * e
                rd[(j, src, e)] = A.ds(f"ds_read_b128 {v(b, 4)}, v{20 + 2 * j + e} offset:{src * 16384 + j * 2048}")
    A.wait_vm_all()
    for j in range(2):
        b = 32 + 40 * j
        Sx, Y1, Y2, Y3, T = b, b + 8, b + 16, b + 24, b + 32
        A.wait_lg(rd[(j, 3, 1)])
        for i in range(0, 8, 2):
            A(f"v_pk_add_f32 {v(Y1 + i, 2)}, {v(Y1 + i, 2)}, {v(Y2 + i, 2)}")
        for i in range(0, 8, 2):
            A(f"v_pk_add_f32 {v(Y1 + i, 2)}, {v(Y1 + i, 2)}, {v(Y3 + i, 2)}")
        for i in range(8):
            A(f"v_exp_f32 {v(T + i)}, -{v(Y1 + i)}")
        for i in range(0, 8, 2):
            A(f"v_pk_mul_f32 {v(Sx + i, 2)}, {v(Sx + i, 2)}, {v(Y1 + i, 2)}")
        for i in range(0, 8, 2):
            A(f"v_pk_add_f32 {v(T + i, 2)}, {v(T + i, 2)}, v[26:27] op_sel_hi:[1,0]")
        for i in range(8):
            A(f"v_rcp_f32 {v(T + i)}, {v(T + i)}")
        for i in range(4):
            A(f"v_lshlrev_b32 {v(Y2 + 2 * i)}, 16, {v(XR + 4 * j + i)}")
            A(f"v_and_b32 {v(Y2 + 2 * i + 1)}, 0xffff0000, {v(XR + 4 * j + i)}")
        for i in range(0, 8, 2):
            A(f"v_pk_mul_f32 {v(Sx + i, 2)}, {v(Sx + i, 2)}, {v(T + i, 2)}")
        for i in range(0, 8, 2):
            A(f"v_pk_fma_f32 {v(Sx + i, 2)}, {v(Sx + i, 2)}, v[24:25], {v(Y2 + i, 2)} op_sel_hi:[1,0,1]")
        for i in range(4):
            A(f"v_cvt_pk_bf16_f32 {v(T + i)}, {v(Sx + 2 * i)}, {v(Sx + 2 * i + 1)}")
        A.vmem(f"buffer_store_dwordx4 {v(T, 4)}, v10, {s(SRD_O, 4)}, {s(sX0 if j == 0 else sX1)} offen")
    A.label("K2_END")
    A("s_endpgm")
    return A.lines


def kd(name, vgpr, accum, sgpr=102):
    return f""".section .rodata,"a"
.p2align 6
.amdhsa_kernel {name}
  .amdhsa_next_free_vgpr {vgpr}
  .amdhsa_next_free_sgpr {sgpr}
  .amdhsa_accum_offset {accum}
  .amdhsa_group_segment_fixed_size 0
  .amdhsa_kernarg_size 80
  .amdhsa_user_sgpr_count 2
  .amdhsa_user_sgpr_kernarg_segment_ptr 1
  .amdhsa_system_sgpr_workgroup_id_x 1
.end_amdhsa_kernel
"""


def func(name, lines):
    return f".text\n.globl {name}\n.p2align 8\n.type {name},@function\n" + render(pad_hazards(lines))


def build(with_k1=True):
    import gen_k1
    out = "; Two launches: K1 = layernorm statistics, QKV + windowed attention, FFN1 + mish, weight packing; K2 = output GEMMs + gate\n"
    out += f"; @launch kernel={K1} grid=(256,1,1) block=(512,1,1) lds={gen_k1.LDS_BYTES}\n"
    out += f"; @launch kernel={K2} grid=(224,1,1) block=(256,1,1) lds=65536\n"
    out += '.amdgcn_target "amdgcn-amd-amdhsa--gfx950"\n'
    out += func(K1, gen_k1.gen_k1())
    out += func(K2, gen_k2())
    out += kd(K1, 256, 256)
    out += kd(K2, 320, 256)
    return out


if __name__ == "__main__":
    path = sys.argv[1] if len(sys.argv) > 1 else f"cdna_kernels/{NAME}.s"
    open(path, "w").write(build())
    print("wrote", path)
```

```python
from asmgen import Asm
from gen import DBG
from gen import v, a, s, srd, stamp, dump_stamps, K1, NKS, AO_SIZE, WP_OFF, WP_SIZE, X_BYTES, LOG2E

LDS_BYTES = 163840
SRD_X, SRD_W, SRD_AO, SRD_PP, SRD_WP, SRD_B = 20, 24, 28, 32, 36, 40
sWAVE, sRB, sSEL, sI, sP, sIP = 3, 44, 45, 46, 47, 48
sT0, sT1 = 49, 50
OOB = 0x40000000
ONES = 0x3F803F80


def fbits(x):
    import struct
    return struct.unpack("<I", struct.pack("<f", x))[0]


def dma(A, voff, srd_, gbase, gimm, lbase, limm):
    A(f"s_add_u32 m0, {s(lbase)}, {limm}")
    A(f"s_add_u32 {s(sT0)}, {s(gbase)}, {gimm}")
    return A.vmem(f"buffer_load_dwordx4 {v(voff)}, {s(srd_, 4)}, {s(sT0)} offen lds")


def x_dma_voff(A, dst, t0, t1):
    A(f"v_lshrrev_b32 {v(t0)}, 4, v0")
    A(f"s_and_b32 {s(sT0)}, {s(sWAVE)}, 1")
    A(f"s_lshl_b32 {s(sT0)}, {s(sT0)}, 2")
    A(f"v_add_u32 {v(t0)}, {s(sT0)}, {v(t0)}")
    A(f"v_and_b32 {v(t1)}, 7, v0")
    A(f"v_xor_b32 {v(t0)}, {v(t0)}, {v(t1)}")
    A(f"v_lshrrev_b32 {v(t1)}, 3, v0")
    A(f"v_mul_u32_u24 {v(t1)}, 896, {v(t1)}")
    A(f"v_lshl_add_u32 {v(dst)}, {v(t0)}, 4, {v(t1)}")


def x_read_addr(A, dst, t0, t1, t2, base):
    A(f"v_and_b32 {v(t0)}, 15, v0")
    A(f"v_lshlrev_b32 {v(t0)}, 1, {v(t0)}")
    A(f"v_bfe_u32 {v(t1)}, v0, 4, 1")
    A(f"v_add_u32 {v(t0)}, {v(t0)}, {v(t1)}")
    A(f"s_lshl_b32 {s(sT0)}, {s(sI)}, 5")
    A(f"v_add_u32 {v(t0)}, {s(sT0)}, {v(t0)}")
    A(f"v_lshlrev_b32 {v(t0)}, 7, {v(t0)}")
    A(f"v_and_b32 {v(t1)}, 3, v0")
    A(f"v_bfe_u32 {v(t2)}, v0, 3, 1")
    A(f"v_lshl_add_u32 {v(t1)}, {v(t2)}, 2, {v(t1)}")
    A(f"v_lshrrev_b32 {v(t2)}, 5, v0")
    A(f"s_lshl_b32 {s(sT0)}, {s(sIP)}, 1")
    A(f"v_add_u32 {v(t2)}, {s(sT0)}, {v(t2)}")
    A(f"v_xor_b32 {v(t1)}, {v(t1)}, {v(t2)}")
    A(f"v_lshl_add_u32 {v(t0)}, {v(t1)}, 4, {v(t0)}")
    A(f"v_add_u32 {v(dst)}, {base}, {v(t0)}")
    for q in range(1, 4):
        A(f"v_xor_b32 {v(dst + q)}, {32 * q}, {v(dst)}")


def tr_lane_part(A, dst, t0, t1, colbase, row_hh_shift):
    A(f"v_lshrrev_b32 {v(t0)}, 5, v0")
    A(f"v_lshlrev_b32 {v(t0)}, {row_hh_shift}, {v(t0)}")
    A(f"v_bfe_u32 {v(t1)}, v0, 2, 2")
    A(f"v_add_u32 {v(t0)}, {v(t0)}, {v(t1)}")
    A(f"v_lshlrev_b32 {v(t0)}, 7, {v(t0)}")
    A(f"v_bfe_u32 {v(t1)}, v0, 4, 1")
    A(f"v_lshlrev_b32 {v(t1)}, 5, {v(t1)}")
    A(f"v_and_b32 {v(dst)}, 3, v0")
    A(f"v_lshl_add_u32 {v(t1)}, {v(dst)}, 3, {v(t1)}")
    A(f"v_add_u32 {v(t1)}, {colbase}, {v(t1)}")
    A(f"v_bfe_u32 {v(dst)}, v0, 3, 1")
    A(f"v_lshlrev_b32 {v(dst)}, 6, {v(dst)}")
    A(f"v_xor_b32 {v(t1)}, {v(t1)}, {v(dst)}")
    A(f"v_add_u32 {v(dst)}, {v(t0)}, {v(t1)}")


def split_neg_mean_sigma(A, sq, t, augB, rs_dst, rs_scale, with_sigma):
    m, e2, ve, pk, hi = t, t + 1, t + 2, t + 3, t + 4
    A(f"v_mul_f32 {v(m)}, {fbits(-1.0 / 448):#x}, {v(sq)}")
    A(f"v_mul_f32 {v(e2)}, {fbits(1.0 / 448):#x}, {v(sq + 1)}")
    A(f"v_fma_f32 {v(ve)}, -{v(m)}, {v(m)}, {v(e2)}")
    A(f"v_max_f32 {v(ve)}, 0, {v(ve)}")
    A(f"v_add_f32 {v(ve)}, {fbits(1e-5):#x}, {v(ve)}")
    A(f"v_rsq_f32 {v(e2)}, {v(ve)}")
    A(f"v_cvt_pk_bf16_f32 {v(augB)}, {v(m)}, {v(m)}")
    A(f"v_and_b32 {v(hi)}, 0xffff0000, {v(augB)}")
    A(f"v_sub_f32 {v(m)}, {v(m)}, {v(hi)}")
    if with_sigma:
        A(f"v_mul_f32 {v(ve)}, {v(ve)}, {v(e2)}")
        A(f"v_cvt_pk_bf16_f32 {v(pk)}, {v(ve)}, {v(ve)}")
        A(f"v_and_b32 {v(hi)}, 0xffff0000, {v(pk)}")
        A(f"v_sub_f32 {v(ve)}, {v(ve)}, {v(hi)}")
        A(f"v_cvt_pk_bf16_f32 {v(augB + 1)}, {v(m)}, {v(hi)}")
        A(f"v_cvt_pk_bf16_f32 {v(augB + 2)}, {v(ve)}, 0")
    else:
        A(f"v_cvt_pk_bf16_f32 {v(augB + 1)}, {v(m)}, 0")
        A(f"v_mov_b32 {v(augB + 2)}, 0")
    A(f"v_mov_b32 {v(augB + 3)}, 0")
    if rs_scale is None:
        A(f"v_mov_b32 {v(rs_dst)}, {v(e2)}")
    else:
        A(f"v_mul_f32 {v(rs_dst)}, {rs_scale:#x}, {v(e2)}")
    A("s_mov_b32 exec_lo, 0")
    for k in range(3):
        A(f"v_mov_b32 {v(augB + k)}, 0")
    A("s_mov_b32 exec_lo, -1")


def colsum_ops(part, augA, bias):
    o = []
    o.append(f"v_pk_add_f32 {v(part, 2)}, {v(part, 2)}, {v(part + 4, 2)}")
    o.append(f"v_pk_add_f32 {v(part + 2, 2)}, {v(part + 2, 2)}, {v(part + 6, 2)}")
    o.append(f"v_pk_add_f32 {v(part, 2)}, {v(part, 2)}, {v(part + 2, 2)}")
    o.append(f"v_add_f32 {v(part)}, {v(part)}, {v(part + 1)}")
    o.append(f"v_cvt_pk_bf16_f32 {v(part + 1)}, {v(part)}, {v(part)}")
    o.append(f"v_and_b32 {v(part + 2)}, 0xffff0000, {v(part + 1)}")
    o.append(f"v_sub_f32 {v(part)}, {v(part)}, {v(part + 2)}")
    o.append(f"v_and_b32 {v(part + 1)}, 0xffff, {v(part + 1)}")
    o.append(f"v_cvt_pk_bf16_f32 {v(augA)}, {v(part + 2)}, {v(part)}")
    if bias is not None:
        o.append(f"v_lshl_or_b32 {v(augA + 1)}, {v(bias)}, 16, {v(part + 1)}")
        o.append(f"v_mov_b32 {v(augA + 2)}, {v(bias)}")
    else:
        o.append(f"v_mov_b32 {v(augA + 1)}, {v(part + 1)}")
    return o


def gen_ffn(A):
    WA, X0, P1, MISC = 0, 57344, 73728, 155648
    CSP, STP = MISC, MISC + 2048
    vXoff, vWoff, vXrd, vWrd, vSt, vRs, vBias = 1, 2, 4, 8, 12, 13, 14
    augB, augA, vCs, vSum, vOnes, vHalf, vOne = 18, 22, 26, 28, 31, 32, 34
    vCsW, vCsR = 27, 30
    WB, accM, accE, T, U, P, PART, TMP = 36, 52, 68, 84, 92, 100, 108, 116
    X = 128
    sXg, sXl, sWg, sWl, sAct, sRound, sBuf, sOdd, sLine = 52, 53, 54, 55, 56, 57, 58, 59, 60
    sPPg, sPPl, sPPd, sActive, sActN = 61, 62, 63, 64, 65
    A.reset_counts()
    A.label("FFN")
    A(f"s_and_b32 {s(sOdd)}, {s(sSEL)}, 1")
    A(f"s_mul_i32 {s(sLine)}, {s(sSEL)}, 7")
    A(f"s_lshr_b32 {s(sLine)}, {s(sLine)}, 1")
    A(f"s_lshl_b32 {s(sXg)}, {s(sRB)}, 7")
    A(f"s_lshl_b32 {s(sT0)}, {s(sWAVE)}, 4")
    A(f"s_add_u32 {s(sXg)}, {s(sXg)}, {s(sT0)}")
    A(f"s_mul_i32 {s(sXg)}, {s(sXg)}, 896")
    A(f"s_lshl_b32 {s(sXl)}, {s(sWAVE)}, 11")
    A(f"s_lshl_b32 {s(sWl)}, {s(sWAVE)}, 10")
    A(f"s_add_u32 {s(sT0)}, {s(sLine)}, {s(sOdd)}")
    A(f"s_lshl_b32 {s(sT0)}, {s(sT0)}, 7")
    A(f"s_mul_i32 {s(sWg)}, {s(sWAVE)}, {8 * 3584}")
    A(f"s_add_u32 {s(sWg)}, {s(sWg)}, {s(sT0)}")
    x_dma_voff(A, vXoff, TMP, TMP + 1)
    A(f"v_bfe_u32 {v(TMP)}, v0, 4, 1")
    A(f"v_lshlrev_b32 {v(TMP)}, 2, {v(TMP)}")
    A(f"v_and_b32 {v(TMP + 1)}, 7, v0")
    A(f"v_xor_b32 {v(TMP)}, {v(TMP)}, {v(TMP + 1)}")
    A(f"v_lshlrev_b32 {v(TMP + 4)}, 4, {v(TMP)}")
    A(f"v_lshrrev_b32 {v(TMP + 1)}, 3, v0")
    A(f"v_mul_u32_u24 {v(TMP + 1)}, 3584, {v(TMP + 1)}")
    A(f"v_add_u32 {v(vWoff)}, {v(TMP + 4)}, {v(TMP + 1)}")
    A("s_waitcnt lgkmcnt(0)")
    srd(A, SRD_X, 4, X_BYTES)
    srd(A, SRD_W, 12, 448 * 1792 * 2)

    def xdma(c, slot):
        t0 = dma(A, vXoff, SRD_X, sXg, 128 * c, sXl, slot)
        t1 = dma(A, vXoff, SRD_X, sXg, 128 * c + 7168, sXl, slot + 1024)
        return t1

    def wdma(c, buf):
        return dma(A, vWoff, SRD_W, sWg, c * 64 * 3584, sWl, buf + 8192 * c)

    xt, wt = {}, {}
    xt[0] = xdma(0, X0)
    wt[0] = wdma(0, WA)
    A(f"s_lshl_b32 {s(sT0)}, {s(sRB)}, 3")
    A(f"s_add_u32 {s(sT0)}, {s(sT0)}, {s(sSEL)}")
    A(f"s_lshl_b32 {s(sT0)}, {s(sT0)}, 3")
    A(f"s_add_u32 s70, {s(sT0)}, {s(sWAVE)}")
    A("s_mul_hi_u32 s71, s70, 29826162")
    A(f"s_mul_i32 s72, s71, {NKS}")
    A("s_sub_u32 s72, s70, s72")
    A(f"s_mul_i32 {s(sPPd)}, s71, {NKS}")
    A(f"s_add_u32 {s(sPPd)}, {s(sPPd)}, s72")
    A(f"s_lshl_b32 {s(sPPd)}, {s(sPPd)}, 11")
    A("s_lshr_b32 s73, s72, 1")
    A("s_mul_i32 s73, s73, 28")
    A("s_and_b32 s74, s72, 1")
    A("s_lshl_b32 s75, s74, 4")
    A("s_add_u32 s73, s73, s75")
    A("s_sub_u32 s75, s72, 32")
    A("s_lshl_b32 s75, s75, 4")
    A("s_cmp_lt_u32 s72, 32")
    A("s_cselect_b32 s73, s73, s75")
    A("s_cselect_b32 s76, s8, s10")
    A("s_cselect_b32 s77, s9, s11")
    A(f"s_mov_b32 s78, {1792 * 448 * 2}")
    A(f"s_cselect_b32 s78, {448 * 448 * 2}, s78")
    A("s_cselect_b32 s79, 1, 0")
    A(f"s_mov_b32 {s(SRD_PP)}, s76")
    A(f"s_mov_b32 {s(SRD_PP + 1)}, s77")
    A(f"s_mov_b32 {s(SRD_PP + 2)}, s78")
    A(f"s_mov_b32 {s(SRD_PP + 3)}, 0x20000")
    A(f"s_mul_i32 {s(sPPg)}, s73, 896")
    A("s_lshl_b32 s75, s71, 7")
    A(f"s_add_u32 {s(sPPg)}, {s(sPPg)}, s75")
    A("s_cmp_ge_u32 s70, 1008")
    A(f"s_cselect_b32 {s(sPPg)}, {OOB}, {s(sPPg)}")
    A(f"s_cselect_b32 {s(sPPd)}, {OOB}, {s(sPPd)}")
    A(f"v_lshrrev_b32 {v(TMP)}, 3, v0")
    A(f"v_and_b32 {v(TMP + 1)}, 3, {v(TMP)}")
    A(f"v_lshrrev_b32 {v(TMP + 2)}, 2, {v(TMP)}")
    A(f"v_lshl_add_u32 {v(TMP + 1)}, {v(TMP + 2)}, 3, {v(TMP + 1)}")
    A("s_cmp_eq_u32 s79, 1")
    A("s_cselect_b64 vcc, -1, 0")
    A("s_cselect_b32 s75, 4, 8")
    A(f"v_cndmask_b32 {v(TMP)}, {v(TMP)}, {v(TMP + 1)}, vcc")
    A(f"v_mul_u32_u24 {v(TMP + 1)}, 896, {v(TMP)}")
    A(f"v_add_u32 {v(TMP + 1)}, {v(TMP + 1)}, {v(TMP + 4)}")
    A("s_mul_i32 s75, s75, 896")
    A(f"v_add_u32 {v(TMP + 3)}, s75, {v(TMP + 1)}")
    A("s_and_b32 s75, s79, s74")
    A(f"s_mul_i32 s75, s75, {OOB}")
    A(f"v_mul_lo_u32 {v(TMP + 2)}, {v(TMP + 2)}, s75")
    A(f"v_add_u32 {v(TMP + 3)}, {v(TMP + 3)}, {v(TMP + 2)}")
    A(f"s_lshl_b32 {s(sPPl)}, {s(sWAVE)}, 11")
    PPS = X0 + 5 * 16384
    dma(A, TMP + 1, SRD_PP, sPPg, 0, sPPl, PPS)
    ppt = dma(A, TMP + 3, SRD_PP, sPPg, 0, sPPl, PPS + 1024)
    for c in range(1, 5):
        xt[c] = xdma(c, X0 + 16384 * c)
        wt[c] = wdma(c, WA)
    wt[5] = wdma(5, WA)
    wt[6] = wdma(6, WA)
    srd(A, SRD_AO, 16, AO_SIZE)
    srd(A, SRD_WP, 16, WP_SIZE, WP_OFF)
    srd(A, SRD_B, 14, 1792 * 2)
    A(f"v_and_b32 {v(TMP)}, 31, v0")
    A(f"v_lshlrev_b32 {v(TMP)}, 1, {v(TMP)}")
    for r in range(4):
        A(f"s_add_u32 {s(sT0)}, {s(sOdd)}, {r}")
        A(f"s_and_b32 {s(sT0)}, {s(sT0)}, 3")
        A(f"s_add_u32 {s(sT0)}, {s(sT0)}, {s(sLine)}")
        A(f"s_lshl_b32 {s(sT0)}, {s(sT0)}, 7")
        A(f"s_lshl_b32 {s(sT1)}, {s(sP)}, 6")
        A(f"s_add_u32 {s(sT0)}, {s(sT0)}, {s(sT1)}")
        bt = A.vmem(f"buffer_load_ushort {v(vBias + r)}, {v(TMP)}, {s(SRD_B, 4)}, {s(sT0)} offen")
    A(f"v_lshlrev_b32 {v(vSt)}, 4, v0")
    x_read_addr(A, vXrd, TMP, TMP + 1, TMP + 2, X0)
    A(f"s_lshl_b32 {s(sT1)}, {s(sP)}, 6")
    tr_lane_part(A, TMP + 5, TMP, TMP + 1, s(sT1), 3)
    for q in range(4):
        A(f"s_xor_b32 {s(sT0)}, {s(sIP)}, {q}")
        A(f"s_lshl_b32 {s(sT0)}, {s(sT0)}, 11")
        A(f"v_add_u32 {v(vWrd + q)}, {s(sT0)}, {v(TMP + 5)}")
    A(f"v_mov_b32 {v(vOnes)}, {ONES:#x}")
    A(f"v_mov_b32 {v(vHalf)}, 0.5")
    A(f"v_mov_b32 {v(vOne)}, 1.0")
    A(f"v_mov_b32 {v(vSum)}, 0")
    A(f"v_mov_b32 {v(vSum + 1)}, 0")
    A(f"v_mov_b32 {v(vCs)}, 0")
    A(f"v_mov_b32 {v(augA + 3)}, 0")
    A(f"v_and_b32 {v(TMP)}, 31, v0")
    A(f"v_lshlrev_b32 {v(TMP)}, 5, {v(TMP)}")
    A(f"s_lshl_b32 {s(sT0)}, {s(sP)}, 10")
    A(f"s_add_u32 {s(sT0)}, {s(sT0)}, {CSP}")
    A(f"v_add_u32 {v(vCsR)}, {s(sT0)}, {v(TMP)}")
    A(f"v_lshrrev_b32 {v(TMP)}, 5, v0")
    A(f"s_lshl_b32 {s(sT0)}, {s(sI)}, 1")
    A(f"v_add_u32 {v(TMP)}, {s(sT0)}, {v(TMP)}")
    A(f"v_lshl_add_u32 {v(vCsW)}, {v(TMP)}, 2, {v(vCsR)}")
    tr_lane_part(A, TMP + 5, TMP, TMP + 1, "0", 2)
    A(f"s_add_u32 {s(sT0)}, {s(sPPl)}, {PPS}")
    A(f"v_add_u32 {v(TMP + 5)}, {s(sT0)}, {v(TMP + 5)}")
    A(f"v_xor_b32 {v(TMP + 6)}, 64, {v(TMP + 5)}")
    A.wait_vm(ppt)
    A.ds(f"ds_read_b64_tr_b16 {v(T, 2)}, {v(TMP + 5)}")
    A.ds(f"ds_read_b64_tr_b16 {v(T + 2, 2)}, {v(TMP + 5)} offset:1024")
    A.ds(f"ds_read_b64_tr_b16 {v(T + 4, 2)}, {v(TMP + 6)}")
    A.ds(f"ds_read_b64_tr_b16 {v(T + 6, 2)}, {v(TMP + 6)} offset:1024")
    A.wait_lg_all()
    A.vmem(f"buffer_store_dwordx4 {v(T, 4)}, {v(vSt)}, {s(SRD_WP, 4)}, {s(sPPd)} offen")
    A.vmem(f"buffer_store_dwordx4 {v(T + 4, 4)}, {v(vSt)}, {s(SRD_WP, 4)}, {s(sPPd)} offen offset:1024")
    A(f"s_add_u32 {s(sT0)}, {s(sOdd)}, 1")
    A(f"s_and_b32 {s(sT0)}, {s(sT0)}, 3")
    A(f"s_sub_u32 {s(sT0)}, {s(sT0)}, {s(sOdd)}")
    A(f"s_lshl_b32 {s(sT0)}, {s(sT0)}, 7")
    A(f"s_add_u32 s66, {s(sWg)}, {s(sT0)}")
    A(f"s_lshl_b32 {s(sT0)}, {s(sRB)}, 2")
    A(f"s_add_u32 {s(sT0)}, {s(sT0)}, {s(sI)}")
    A(f"s_mul_i32 s67, {s(sT0)}, {NKS}")
    A("s_add_u32 s67, s67, 32")
    A(f"s_lshl_b32 {s(sT0)}, {s(sP)}, 1")
    A(f"s_add_u32 s67, s67, {s(sT0)}")

    def act_off(dst, r_expr_sgpr):
        A(f"s_add_u32 {s(sT0)}, {s(sOdd)}, {r_expr_sgpr}")
        A(f"s_and_b32 {s(sT0)}, {s(sT0)}, 3")
        A(f"s_add_u32 {s(sT0)}, {s(sT0)}, {s(sLine)}")
        A(f"s_lshl_b32 {s(sT0)}, {s(sT0)}, 2")
        A(f"s_add_u32 {s(sT0)}, {s(sT0)}, s67")
        A(f"s_lshl_b32 {s(dst)}, {s(sT0)}, 10")

    p1 = {}
    for c in range(7):
        A.wait_vm(xt[c])
        A.wait_vm(wt[c])
        A.wait_lg_all()
        A("s_barrier")
        if c == 0:
            stamp(A, 1)
        if c == 1:
            xt[5] = xdma(5, X0 + 5 * 16384)
            xt[6] = xdma(6, X0)
        if c >= 2 and c <= 5:
            for cc in ((0, 1), (2, 3), (4, 5), (6,))[c - 2]:
                p1[cc] = dma(A, vWoff, SRD_W, 66, cc * 64 * 3584, sWl, P1 + 8192 * cc)
        if c > 0:
            delta = 16384 if c < 6 else -5 * 16384
            for q in range(4):
                A(f"v_add_u32 {v(vXrd + q)}, {delta}, {v(vXrd + q)}")
        rx, rw = {}, {}
        for q in range(4):
            rx[q] = A.ds(f"ds_read_b128 {v(X + 16 * c + 4 * q, 4)}, {v(vXrd + q)}")
            A.ds(f"ds_read_b64_tr_b16 {v(WB + 4 * q, 2)}, {v(vWrd + q)} offset:{8192 * c}")
            rw[q] = A.ds(f"ds_read_b64_tr_b16 {v(WB + 4 * q + 2, 2)}, {v(vWrd + q)} offset:{8192 * c + 512}")
        for q in range(4):
            A.wait_lg(rw[q])
            xr = X + 16 * c + 4 * q
            cin = "0" if (c == 0 and q == 0) else v(accM, 16)
            A(f"v_mfma_f32_32x32x16_bf16 {v(accM, 16)}, {v(WB + 4 * q, 4)}, {v(xr, 4)}, {cin}")
            if q == 0:
                for k in range(4):
                    A(f"v_dot2_f32_bf16 {v(vCs)}, {v(WB + k)}, {v(vOnes)}, {v(vCs)}")
            if q in (0, 2):
                for k in range(4):
                    A(f"v_dot2_f32_bf16 {v(vSum)}, {v(xr + k)}, {v(vOnes)}, {v(vSum)}")
                    A(f"v_dot2_f32_bf16 {v(vSum + 1)}, {v(xr + k)}, {v(xr + k)}, {v(vSum + 1)}")
    A(f"v_and_b32 {v(TMP)}, 31, v0")
    A(f"v_lshlrev_b32 {v(TMP)}, 5, {v(TMP)}")
    A(f"s_lshl_b32 {s(sT0)}, {s(sI)}, 10")
    A(f"s_add_u32 {s(sT0)}, {s(sT0)}, {STP}")
    A(f"v_add_u32 {v(TMP)}, {s(sT0)}, {v(TMP)}")
    A(f"v_lshrrev_b32 {v(TMP + 1)}, 5, v0")
    A(f"s_lshl_b32 {s(sT0)}, {s(sP)}, 1")
    A(f"v_add_u32 {v(TMP + 1)}, {s(sT0)}, {v(TMP + 1)}")
    A(f"v_lshl_add_u32 {v(TMP + 1)}, {v(TMP + 1)}, 3, {v(TMP)}")
    A.ds(f"ds_write_b64 {v(TMP + 1)}, {v(vSum, 2)}")
    A.ds(f"ds_write_b32 {v(vCsW)}, {v(vCs)}")
    stamp(A, 2)
    A.wait_vm(p1[6])
    A.wait_vm(bt)
    A.wait_lg_all()
    A("s_barrier")
    stamp(A, 3)
    A.ds(f"ds_read_b128 {v(T, 4)}, {v(TMP)}")
    st = A.ds(f"ds_read_b128 {v(T + 4, 4)}, {v(TMP)} offset:16")
    A.ds(f"ds_read_b128 {v(PART, 4)}, {v(vCsR)}")
    cs = A.ds(f"ds_read_b128 {v(PART + 4, 4)}, {v(vCsR)} offset:16")
    A.wait_lg(st)
    A(f"v_pk_add_f32 {v(T, 2)}, {v(T, 2)}, {v(T + 2, 2)}")
    A(f"v_pk_add_f32 {v(T + 4, 2)}, {v(T + 4, 2)}, {v(T + 6, 2)}")
    A(f"v_pk_add_f32 {v(T, 2)}, {v(T, 2)}, {v(T + 4, 2)}")
    split_neg_mean_sigma(A, T, U, augB, vRs, LOG2E, True)
    A.wait_lg(cs)
    for o in colsum_ops(PART, augA, vBias):
        A(o)
    A(f"v_mfma_f32_32x32x16_bf16 {v(accE, 16)}, {v(augA, 4)}, {v(augB, 4)}, {v(accM, 16)}")
    A(f"v_xor_b32 {v(vCsW)}, 0x1800, {v(vCsW)}")
    A(f"v_xor_b32 {v(vCsR)}, 0x1800, {v(vCsR)}")
    A(f"s_mov_b32 {s(sRound)}, 1")
    act_off(sAct, "0")
    for q in range(4):
        A(f"v_add_u32 {v(vWrd + q)}, {P1}, {v(vWrd + q)}")
    A(f"s_cmp_eq_u32 {s(sP)}, {s(sOdd)}")
    A(f"s_cselect_b32 {s(sActive)}, 1, 0")
    A(f"s_mov_b32 {s(sBuf)}, {WA}")

    def epilogue_ops():
        o = []
        for h in range(2):
            E = accE + 8 * h
            for i in range(0, 8, 2):
                o.append(f"v_pk_mul_f32 {v(E + i, 2)}, {v(E + i, 2)}, {v(vRs - (vRs & 1), 2)} " +
                         ("op_sel:[0,1] op_sel_hi:[1,1]" if vRs & 1 else "op_sel_hi:[1,0]"))
            for i in range(8):
                o.append(f"v_exp_f32 {v(T + i)}, {v(E + i)}")
            for i in range(0, 8, 2):
                o.append(f"v_pk_fma_f32 {v(U + i, 2)}, {v(T + i, 2)}, {v(vHalf, 2)}, {v(vOne, 2)} op_sel_hi:[1,0,0]")
            for i in range(0, 8, 2):
                o.append(f"v_pk_fma_f32 {v(U + i, 2)}, {v(T + i, 2)}, {v(U + i, 2)}, {v(vOne, 2)} op_sel_hi:[1,1,0]")
            for i in range(8):
                o.append(f"v_rcp_f32 {v(U + i)}, {v(U + i)}")
            for i in range(0, 8, 2):
                o.append(f"v_pk_fma_f32 {v(E + i, 2)}, {v(E + i, 2)}, {v(U + i, 2)}, {v(E + i, 2)} neg_lo:[1,0,0] neg_hi:[1,0,0]")
            for i in range(4):
                o.append(f"v_cvt_pk_bf16_f32 {v(P + 4 * h + i)}, {v(E + 2 * i)}, {v(E + 2 * i + 1)}")
            o.append(("store", f"buffer_store_dwordx4 {v(P + 4 * h, 4)}, {v(vSt)}, {s(SRD_AO, 4)}, {s(sAct)} offen offset:{1024 * h}"))
        return o

    def emit_op(o):
        if isinstance(o, tuple):
            A.vmem(o[1])
        else:
            A(o)

    A.label("FFN_LOOP")
    A.reset_counts()
    A(f"s_cmp_eq_u32 {s(sRound)}, 3")
    A("s_cbranch_scc1 FFN_LAST")
    A(f"s_add_u32 {s(sT0)}, {s(sRound)}, 1")
    A(f"s_add_u32 {s(sT0)}, {s(sT0)}, {s(sOdd)}")
    A(f"s_and_b32 {s(sT0)}, {s(sT0)}, 3")
    A(f"s_sub_u32 {s(sT0)}, {s(sT0)}, {s(sOdd)}")
    A(f"s_lshl_b32 {s(sT0)}, {s(sT0)}, 7")
    A(f"s_add_u32 s66, {s(sWg)}, {s(sT0)}")
    A(f"s_add_u32 s68, {s(sWl)}, {s(sBuf)}")
    for c in range(7):
        dma(A, vWoff, SRD_W, 66, c * 64 * 3584, 68, 8192 * c)
    A("s_branch FFN_MAIN")
    A.label("FFN_LAST")
    A(f"s_cmp_eq_u32 {s(sActive)}, 0")
    A("s_cbranch_scc1 FFN_EPI")
    A.label("FFN_MAIN")
    A.reset_counts()
    order = [(c, 0) for c in range(7)] + [(c, q) for c in range(7) for q in range(1, 4)]
    DEPTH = 4
    rd = {}

    def wread(n):
        c, q = order[n]
        b = WB + 4 * (n % DEPTH)
        A.ds(f"ds_read_b64_tr_b16 {v(b, 2)}, {v(vWrd + q)} offset:{8192 * c}")
        rd[n] = A.ds(f"ds_read_b64_tr_b16 {v(b + 2, 2)}, {v(vWrd + q)} offset:{8192 * c + 512}")

    epi = epilogue_ops()
    A(f"v_mov_b32 {v(vCs)}, 0")
    for n in range(DEPTH - 1):
        wread(n)
    fill = [1] * 7 + [4] * 5 + [3] * 4 + [3] * 12
    ei = 0
    cs_ops = None
    for n in range(28):
        if n + DEPTH - 1 < 28:
            wread(n + DEPTH - 1)
        A.wait_lg(rd[n])
        c, q = order[n]
        b = WB + 4 * (n % DEPTH)
        cin = "0" if n == 0 else v(accM, 16)
        A(f"v_mfma_f32_32x32x16_bf16 {v(accM, 16)}, {v(b, 4)}, {v(X + 16 * c + 4 * q, 4)}, {cin}")
        if n < 7:
            for k in range(4):
                A(f"v_dot2_f32_bf16 {v(vCs)}, {v(b + k)}, {v(vOnes)}, {v(vCs)}")
        if n == 7:
            csw = A.ds(f"ds_write_b32 {v(vCsW)}, {v(vCs)}")
        if n == 12:
            A.wait_lg(csw)
            A("s_barrier")
            A.ds(f"ds_read_b128 {v(PART, 4)}, {v(vCsR)}")
            csr = A.ds(f"ds_read_b128 {v(PART + 4, 4)}, {v(vCsR)} offset:16")
        if n == 16:
            A.wait_lg(csr)
            cs_ops = colsum_ops(PART, augA, vBias + 1)
        k = fill[n]
        while k > 0 and ei < len(epi):
            emit_op(epi[ei])
            ei += 1
            k -= 1
        if cs_ops and n >= 16:
            for _ in range(2):
                if cs_ops:
                    A(cs_ops.pop(0))
    while ei < len(epi):
        emit_op(epi[ei])
        ei += 1
    assert not cs_ops
    A(f"v_mfma_f32_32x32x16_bf16 {v(accE, 16)}, {v(augA, 4)}, {v(augB, 4)}, {v(accM, 16)}")
    for k in range(1, 3):
        A(f"v_mov_b32 {v(vBias + k)}, {v(vBias + k + 1)}")
    A(f"v_xor_b32 {v(vCsW)}, 0x1800, {v(vCsW)}")
    A(f"v_xor_b32 {v(vCsR)}, 0x1800, {v(vCsR)}")
    act_off(sAct, s(sRound))
    A(f"s_cmp_eq_u32 {s(sRound)}, 3")
    A("s_cbranch_scc1 FFN_FIN")
    A(f"s_mov_b32 {s(sT1)}, {P1}")
    A(f"s_cmp_eq_u32 {s(sBuf)}, {WA}")
    A(f"s_cselect_b32 {s(sT0)}, {-P1 & 0xffffffff:#x}, {s(sT1)}")
    A(f"s_cselect_b32 {s(sBuf)}, {P1}, {WA}")
    for q in range(4):
        A(f"v_add_u32 {v(vWrd + q)}, {s(sT0)}, {v(vWrd + q)}")
    A(f"s_add_u32 {s(sRound)}, {s(sRound)}, 1")
    A("s_waitcnt vmcnt(2)")
    A("s_barrier")
    if DBG:
        A(f"s_cmp_eq_u32 {s(sRound)}, 2")
        A("s_cbranch_scc1 FFN_ST4")
        stamp(A, 5)
        A("s_branch FFN_LOOP")
        A.label("FFN_ST4")
        stamp(A, 4)
    A("s_branch FFN_LOOP")
    A.label("FFN_EPI")
    A.reset_counts()
    for o in epilogue_ops():
        emit_op(o)
    A("s_barrier")
    dump_stamps(A, 0, 16, sWAVE)
    A("s_endpgm")
    A.label("FFN_FIN")
    A.reset_counts()
    stamp(A, 6)
    for o in epilogue_ops():
        emit_op(o)
    dump_stamps(A, 0, 16, sWAVE)
    A("s_endpgm")


def gen_att(A):
    STAGE, XH, WQ = 43008, 16384, 18432
    MISC = 3 * STAGE
    STM, STH, CSP = MISC, MISC + 4096, MISC + 6144
    QSEC = 5120
    vXoff, vHoff, vWoff = 1, 2, 3
    vXrd, vHrd, vWrd = 4, 8, 12
    vDelta, vOnes, vSum, vSumH, vCs = 24, 25, 26, 28, 30
    acc = 36
    accH = acc + 48
    FB = 100
    TMP = 140
    sXg, sXl, sHg, sHl, sWg, sWl, sC, sStage, sHalo, sNext = 52, 53, 54, 55, 56, 57, 58, 59, 60, 61
    sSec1, sSec2 = 62, 63
    A.label("ATT")
    A.reset_counts()
    A(f"s_lshl_b32 {s(sT1)}, {s(sRB)}, 7")
    A(f"s_lshl_b32 {s(sT0)}, {s(sWAVE)}, 4")
    A(f"s_add_u32 {s(sXg)}, {s(sT1)}, {s(sT0)}")
    A(f"s_mul_i32 {s(sXg)}, {s(sXg)}, 896")
    A(f"s_lshl_b32 {s(sXl)}, {s(sWAVE)}, 11")
    A(f"s_lshl_b32 {s(sT0)}, {s(sWAVE)}, 1")
    A(f"s_add_u32 {s(sHg)}, {s(sT1)}, {s(sT0)}")
    A(f"s_sub_u32 {s(sHg)}, {s(sHg)}, 16")
    A(f"s_mul_i32 {s(sHg)}, {s(sHg)}, 896")
    A(f"s_cmp_eq_u32 {s(sRB)}, 0")
    A(f"s_cselect_b32 {s(sHg)}, {OOB}, {s(sHg)}")
    A(f"s_lshl_b32 {s(sHl)}, {s(sWAVE)}, 8")
    A(f"s_mul_i32 {s(sWg)}, {s(sWAVE)}, {8 * 2688}")
    A(f"s_mul_i32 {s(sT0)}, {s(sSEL)}, 112")
    A(f"s_add_u32 {s(sWg)}, {s(sWg)}, {s(sT0)}")
    A(f"s_lshl_b32 {s(sWl)}, {s(sWAVE)}, 10")
    x_dma_voff(A, vXoff, TMP, TMP + 1)
    A(f"s_and_b32 {s(sT0)}, {s(sWAVE)}, 3")
    A(f"s_add_u32 {s(sT0)}, {s(sT0)}, 4")
    A(f"v_and_b32 {v(TMP)}, 7, v0")
    A(f"v_xor_b32 {v(TMP)}, {s(sT0)}, {v(TMP)}")
    A(f"v_lshrrev_b32 {v(TMP + 1)}, 3, v0")
    A(f"v_mul_u32_u24 {v(TMP + 1)}, 896, {v(TMP + 1)}")
    A(f"v_lshl_add_u32 {v(vHoff)}, {v(TMP)}, 4, {v(TMP + 1)}")
    A(f"v_bfe_u32 {v(TMP)}, v0, 4, 1")
    A(f"v_lshlrev_b32 {v(TMP)}, 2, {v(TMP)}")
    A(f"v_and_b32 {v(TMP + 1)}, 7, v0")
    A(f"v_xor_b32 {v(TMP)}, {v(TMP)}, {v(TMP + 1)}")
    A(f"v_min_u32 {v(TMP)}, 6, {v(TMP)}")
    A(f"v_lshrrev_b32 {v(TMP + 1)}, 3, v0")
    A(f"v_mul_u32_u24 {v(TMP + 1)}, 2688, {v(TMP + 1)}")
    A(f"v_lshl_add_u32 {v(vWoff)}, {v(TMP)}, 4, {v(TMP + 1)}")
    A("s_waitcnt lgkmcnt(0)")
    srd(A, SRD_X, 4, X_BYTES)
    srd(A, SRD_W, 6, 448 * 1344 * 2)

    def chunk_dma(c_imm, lds_sgpr, lds_imm, gx, gh, gw):
        A(f"s_add_u32 s70, {s(sXl)}, {lds_sgpr}")
        A(f"s_add_u32 s71, {s(sHl)}, {lds_sgpr}")
        A(f"s_add_u32 s72, {s(sWl)}, {lds_sgpr}")
        dma(A, vXoff, SRD_X, gx, 128 * c_imm, 70, lds_imm)
        dma(A, vXoff, SRD_X, gx, 128 * c_imm + 7168, 70, lds_imm + 1024)
        A("s_mov_b64 exec, 0xffff")
        dma(A, vHoff, SRD_X, gh, 128 * c_imm, 71, lds_imm + XH)
        A("s_mov_b64 exec, -1")
        t = None
        for sec in range(3):
            t = dma(A, vWoff, SRD_W, gw, c_imm * 64 * 2688 + 896 * sec, 72, lds_imm + WQ + 8192 * sec)
        return t

    for c in range(3):
        chunk_dma(c, "0", STAGE * c, sXg, sHg, sWg)
    A(f"s_add_u32 {s(sXg)}, {s(sXg)}, {128 * 3}")
    A(f"s_add_u32 {s(sHg)}, {s(sHg)}, {128 * 3}")
    A(f"s_add_u32 {s(sWg)}, {s(sWg)}, {3 * 64 * 2688}")
    srd(A, SRD_AO, 16, AO_SIZE)
    A(f"s_add_u32 {s(sT0)}, {s(sWAVE)}, 2")
    A(f"s_and_b32 {s(sT0)}, {s(sT0)}, 7")
    A(f"s_cmp_lt_u32 {s(sT0)}, 4")
    A(f"s_cselect_b32 {s(sHalo)}, 1, 0")
    A(f"s_and_b32 {s(sT0)}, {s(sWAVE)}, 1")
    A(f"s_and_b32 {s(sT0)}, {s(sT0)}, {s(sHalo)}")
    A(f"s_add_u32 {s(sSec1)}, {s(sT0)}, 1")
    A(f"s_sub_u32 {s(sSec2)}, 3, {s(sSec1)}")
    x_read_addr(A, vXrd, TMP, TMP + 1, TMP + 2, "0")
    A(f"v_and_b32 {v(TMP)}, 7, v0")
    A(f"v_lshlrev_b32 {v(TMP)}, 1, {v(TMP)}")
    A(f"v_bfe_u32 {v(TMP + 1)}, v0, 4, 1")
    A(f"v_add_u32 {v(TMP)}, {v(TMP)}, {v(TMP + 1)}")
    A(f"v_lshlrev_b32 {v(TMP)}, 7, {v(TMP)}")
    A(f"v_and_b32 {v(TMP + 1)}, 3, v0")
    A(f"v_add_u32 {v(TMP + 1)}, 4, {v(TMP + 1)}")
    A(f"v_lshrrev_b32 {v(TMP + 2)}, 5, v0")
    A(f"s_lshl_b32 {s(sT0)}, {s(sIP)}, 1")
    A(f"v_add_u32 {v(TMP + 2)}, {s(sT0)}, {v(TMP + 2)}")
    A(f"v_xor_b32 {v(TMP + 1)}, {v(TMP + 1)}, {v(TMP + 2)}")
    A(f"v_lshl_add_u32 {v(TMP)}, {v(TMP + 1)}, 4, {v(TMP)}")
    A(f"v_add_u32 {v(vHrd)}, {XH}, {v(TMP)}")
    for q in range(1, 4):
        A(f"v_xor_b32 {v(vHrd + q)}, {32 * q}, {v(vHrd)}")
    A(f"s_mul_i32 {s(sT1)}, {s(sP)}, 56")
    tr_lane_part(A, TMP + 5, TMP, TMP + 1, s(sT1), 3)
    for sl in range(3):
        for q in range(4):
            A(f"s_xor_b32 {s(sT0)}, {s(sIP)}, {q}")
            A(f"s_lshl_b32 {s(sT0)}, {s(sT0)}, 11")
            if sl == 0:
                A(f"s_add_u32 {s(sT0)}, {s(sT0)}, {WQ}")
            else:
                A(f"s_lshl_b32 {s(sT1)}, {s(sSec1 if sl == 1 else sSec2)}, 13")
                A(f"s_add_u32 {s(sT0)}, {s(sT0)}, {s(sT1)}")
                A(f"s_add_u32 {s(sT0)}, {s(sT0)}, {WQ}")
            A(f"v_add_u32 {v(vWrd + 4 * sl + q)}, {s(sT0)}, {v(TMP + 5)}")
    A(f"v_mov_b32 {v(vOnes)}, {ONES:#x}")
    for r in (vSum, vSum + 1, vSumH, vSumH + 1, vCs, vCs + 1, vCs + 2):
        A(f"v_mov_b32 {v(r)}, 0")
    for r in range(64):
        A(f"v_mov_b32 {v(acc + r)}, 0")
    stamp(A, 1)
    A(f"s_mov_b32 {s(sC)}, 0")
    A(f"s_mov_b32 {s(sStage)}, 0")
    A(f"s_cmp_eq_u32 {s(sHalo)}, 1")
    A("s_cbranch_scc1 ATT_LOOP_H")

    def loop(halo):
        L = "H" if halo else "N"
        A.label(f"ATT_LOOP_{L}")
        A.reset_counts()
        A(f"s_cmp_eq_u32 {s(sC)}, 0")
        A(f"s_cbranch_scc1 ATT_W12_{L}")
        A(f"s_cmp_eq_u32 {s(sC)}, 6")
        A(f"s_cbranch_scc1 ATT_W0_{L}")
        A("s_waitcnt vmcnt(6)")
        A(f"s_branch ATT_GO_{L}")
        A.label(f"ATT_W12_{L}")
        A("s_waitcnt vmcnt(12)")
        A(f"s_branch ATT_GO_{L}")
        A.label(f"ATT_W0_{L}")
        A("s_waitcnt vmcnt(0)")
        A.label(f"ATT_GO_{L}")
        A("s_barrier")
        if DBG:
            A(f"s_cmp_lg_u32 {s(sC)}, 0")
            A(f"s_cbranch_scc1 ATT_NS_{L}")
            stamp(A, 2)
            A.label(f"ATT_NS_{L}")
        A(f"s_sub_u32 {s(sT0)}, {s(sC)}, 1")
        A(f"s_cmp_gt_u32 {s(sT0)}, 3")
        A(f"s_cbranch_scc1 ATT_NOLD_{L}")
        A(f"s_add_u32 {s(sNext)}, {s(sStage)}, 2")
        A(f"s_cmp_ge_u32 {s(sNext)}, 3")
        A(f"s_cselect_b32 {s(sT0)}, 3, 0")
        A(f"s_sub_u32 {s(sNext)}, {s(sNext)}, {s(sT0)}")
        A(f"s_mul_i32 {s(sNext)}, {s(sNext)}, {STAGE}")
        chunk_dma(0, s(sNext), 0, sXg, sHg, sWg)
        A(f"s_add_u32 {s(sXg)}, {s(sXg)}, 128")
        A(f"s_add_u32 {s(sHg)}, {s(sHg)}, 128")
        A(f"s_add_u32 {s(sWg)}, {s(sWg)}, {64 * 2688}")
        A.label(f"ATT_NOLD_{L}")
        A.reset_counts()
        rd = {}

        def reads(q):
            b = FB + 20 * (q & 1)
            A.ds(f"ds_read_b128 {v(b, 4)}, {v(vXrd + q)}")
            if halo:
                A.ds(f"ds_read_b128 {v(b + 4, 4)}, {v(vHrd + q)}")
            for sl in range(3):
                A.ds(f"ds_read_b64_tr_b16 {v(b + 8 + 4 * sl, 2)}, {v(vWrd + 4 * sl + q)}")
                rd[q] = A.ds(f"ds_read_b64_tr_b16 {v(b + 10 + 4 * sl, 2)}, {v(vWrd + 4 * sl + q)} offset:512")

        reads(0)
        for q in range(4):
            b = FB + 20 * (q & 1)
            if q == 0:
                reads(1)
            A.wait_lg(rd[q])
            for sl in range(3):
                A(f"v_mfma_f32_32x32x16_bf16 {v(acc + 16 * sl, 16)}, {v(b + 8 + 4 * sl, 4)}, {v(b, 4)}, {v(acc + 16 * sl, 16)}")
            if halo:
                A(f"v_mfma_f32_32x32x16_bf16 {v(accH, 16)}, {v(b + 12, 4)}, {v(b + 4, 4)}, {v(accH, 16)}")
            if q in (0, 2):
                for k in range(4):
                    A(f"v_dot2_f32_bf16 {v(vSum)}, {v(b + k)}, {v(vOnes)}, {v(vSum)}")
                    A(f"v_dot2_f32_bf16 {v(vSum + 1)}, {v(b + k)}, {v(b + k)}, {v(vSum + 1)}")
            if q == 0:
                for sl in range(3):
                    for k in range(4):
                        A(f"v_dot2_f32_bf16 {v(vCs + sl)}, {v(b + 8 + 4 * sl + k)}, {v(vOnes)}, {v(vCs + sl)}")
                if halo:
                    for k in range(4):
                        A(f"v_dot2_f32_bf16 {v(vSumH)}, {v(b + 4 + k)}, {v(vOnes)}, {v(vSumH)}")
                        A(f"v_dot2_f32_bf16 {v(vSumH + 1)}, {v(b + 4 + k)}, {v(b + 4 + k)}, {v(vSumH + 1)}")
            if q + 2 < 4:
                reads(q + 2)
        A(f"s_add_u32 {s(sStage)}, {s(sStage)}, 1")
        A(f"s_cmp_eq_u32 {s(sStage)}, 3")
        A(f"s_mov_b32 {s(sT1)}, {STAGE}")
        A(f"s_cselect_b32 {s(sT0)}, {(-2 * STAGE) & 0xffffffff:#x}, {s(sT1)}")
        A(f"s_cselect_b32 {s(sStage)}, 0, {s(sStage)}")
        A(f"v_mov_b32 {v(vDelta)}, {s(sT0)}")
        for r in range(4):
            A(f"v_add_u32 {v(vXrd + r)}, {v(vDelta)}, {v(vXrd + r)}")
        if halo:
            for r in range(4):
                A(f"v_add_u32 {v(vHrd + r)}, {v(vDelta)}, {v(vHrd + r)}")
        for r in range(12):
            A(f"v_add_u32 {v(vWrd + r)}, {v(vDelta)}, {v(vWrd + r)}")
        A(f"s_add_u32 {s(sC)}, {s(sC)}, 1")
        A(f"s_cmp_lt_u32 {s(sC)}, 7")
        A(f"s_cbranch_scc1 ATT_LOOP_{L}")

    loop(False)
    A("s_branch ATT_POST")
    loop(True)
    A.label("ATT_POST")
    A.reset_counts()
    stamp(A, 3)
    R = 4
    A(f"v_and_b32 {v(R)}, 31, v0")
    A(f"v_lshrrev_b32 {v(R + 1)}, 5, v0")
    A(f"v_lshlrev_b32 {v(R + 2)}, 5, {v(R)}")
    A(f"s_lshl_b32 {s(sT0)}, {s(sI)}, 10")
    A(f"s_add_u32 {s(sT0)}, {s(sT0)}, {STM}")
    A(f"v_add_u32 {v(R + 3)}, {s(sT0)}, {v(R + 2)}")
    A(f"s_lshl_b32 {s(sT0)}, {s(sP)}, 1")
    A(f"v_add_u32 {v(R + 4)}, {s(sT0)}, {v(R + 1)}")
    A(f"v_lshl_add_u32 {v(R + 4)}, {v(R + 4)}, 3, {v(R + 3)}")
    A.ds(f"ds_write_b64 {v(R + 4)}, {v(vSum, 2)}")
    A(f"v_lshlrev_b32 {v(R + 5)}, 6, {v(R)}")
    A(f"v_add_u32 {v(R + 5)}, {STH}, {v(R + 5)}")
    A(f"s_and_b32 {s(sT0)}, {s(sWAVE)}, 1")
    A(f"s_lshl_b32 {s(sT1)}, {s(sP)}, 1")
    A(f"s_add_u32 {s(sT0)}, {s(sT0)}, {s(sT1)}")
    A(f"s_lshl_b32 {s(sT0)}, {s(sT0)}, 1")
    A(f"v_add_u32 {v(R + 4)}, {s(sT0)}, {v(R + 1)}")
    A(f"v_lshl_add_u32 {v(R + 4)}, {v(R + 4)}, 3, {v(R + 5)}")
    A(f"s_cmp_eq_u32 {s(sHalo)}, 0")
    A("s_cbranch_scc1 ATT_NOHS")
    A(f"ds_write_b64 {v(R + 4)}, {v(vSumH, 2)}")
    A.label("ATT_NOHS")
    A(f"s_mul_i32 {s(sT0)}, {s(sP)}, 3072")
    A(f"s_add_u32 {s(sT0)}, {s(sT0)}, {CSP}")
    A(f"v_add_u32 {v(R + 6)}, {s(sT0)}, {v(R + 2)}")
    A(f"s_lshl_b32 {s(sT0)}, {s(sSec1)}, 10")
    A(f"v_add_u32 {v(R + 7)}, {s(sT0)}, {v(R + 6)}")
    A(f"s_lshl_b32 {s(sT0)}, {s(sSec2)}, 10")
    A(f"v_add_u32 {v(R + 8)}, {s(sT0)}, {v(R + 6)}")
    A(f"s_lshl_b32 {s(sT0)}, {s(sI)}, 1")
    A(f"v_add_u32 {v(R + 9)}, {s(sT0)}, {v(R + 1)}")
    A(f"v_lshlrev_b32 {v(R + 9)}, 2, {v(R + 9)}")
    for sl in range(3):
        A(f"v_add_u32 {v(R + 10)}, {v(R + 6 + sl)}, {v(R + 9)}")
        A(f"ds_write_b32 {v(R + 10)}, {v(vCs + sl)}")
    A("s_waitcnt lgkmcnt(0)")
    A("s_barrier")
    stamp(A, 4)
    A.reset_counts()
    PART, augA, augB, augBH = 100, 124, 136, 140
    ST, UT = 144, 160
    vRs, vRsH, vRsQ = 24, 26, 28
    A.ds(f"ds_read_b128 {v(ST, 4)}, {v(R + 3)}")
    st = A.ds(f"ds_read_b128 {v(ST + 4, 4)}, {v(R + 3)} offset:16")
    for k in range(4):
        sth = A.ds(f"ds_read_b128 {v(ST + 8 + 4 * k, 4)}, {v(R + 5)} offset:{16 * k}") if k < 2 else None
    csr = []
    for sl in range(3):
        A.ds(f"ds_read_b128 {v(PART + 8 * sl, 4)}, {v(R + 6 + sl)}")
        csr.append(A.ds(f"ds_read_b128 {v(PART + 8 * sl + 4, 4)}, {v(R + 6 + sl)} offset:16"))
    A.ds(f"ds_read_b128 {v(UT + 8, 4)}, {v(R + 5)} offset:32")
    sth = A.ds(f"ds_read_b128 {v(UT + 12, 4)}, {v(R + 5)} offset:48")
    A.wait_lg(st)
    A(f"v_pk_add_f32 {v(ST, 2)}, {v(ST, 2)}, {v(ST + 2, 2)}")
    A(f"v_pk_add_f32 {v(ST + 4, 2)}, {v(ST + 4, 2)}, {v(ST + 6, 2)}")
    A(f"v_pk_add_f32 {v(ST, 2)}, {v(ST, 2)}, {v(ST + 4, 2)}")
    split_neg_mean_sigma(A, ST, UT, augB, vRs, None, False)
    A(f"v_mul_f32 {v(vRsQ)}, {fbits(28 ** -0.5 * 1.4426950408889634):#x}, {v(vRs)}")
    for sl in range(3):
        A.wait_lg(csr[sl])
        for o in colsum_ops(PART + 8 * sl, augA + 4 * sl, None):
            A(o)
        A(f"v_mov_b32 {v(augA + 4 * sl + 2)}, 0")
        A(f"v_mov_b32 {v(augA + 4 * sl + 3)}, 0")
    for sl in range(3):
        A(f"v_mfma_f32_32x32x16_bf16 {v(acc + 16 * sl, 16)}, {v(augA + 4 * sl, 4)}, {v(augB, 4)}, {v(acc + 16 * sl, 16)}")
    A.wait_lg(sth)
    A(f"s_cmp_eq_u32 {s(sHalo)}, 0")
    A("s_cbranch_scc1 ATT_NOHA")
    A(f"v_pk_add_f32 {v(ST + 8, 2)}, {v(ST + 8, 2)}, {v(ST + 10, 2)}")
    A(f"v_pk_add_f32 {v(ST + 12, 2)}, {v(ST + 12, 2)}, {v(ST + 14, 2)}")
    A(f"v_pk_add_f32 {v(UT + 8, 2)}, {v(UT + 8, 2)}, {v(UT + 10, 2)}")
    A(f"v_pk_add_f32 {v(UT + 12, 2)}, {v(UT + 12, 2)}, {v(UT + 14, 2)}")
    A(f"v_pk_add_f32 {v(ST + 8, 2)}, {v(ST + 8, 2)}, {v(ST + 12, 2)}")
    A(f"v_pk_add_f32 {v(UT + 8, 2)}, {v(UT + 8, 2)}, {v(UT + 12, 2)}")
    A(f"v_pk_add_f32 {v(ST + 8, 2)}, {v(ST + 8, 2)}, {v(UT + 8, 2)}")
    split_neg_mean_sigma(A, ST + 8, UT, augBH, vRsH, None, False)
    A(f"v_mfma_f32_32x32x16_bf16 {v(accH, 16)}, {v(augA + 4, 4)}, {v(augBH, 4)}, {v(accH, 16)}")
    A.label("ATT_NOHA")
    W0, W1 = 4, 5
    A(f"v_and_b32 {v(6)}, 15, v0")
    A(f"v_lshrrev_b32 {v(7)}, 2, {v(6)}")
    A(f"v_and_b32 {v(8)}, 1, {v(7)}")
    A(f"v_lshlrev_b32 {v(8)}, 1, {v(8)}")
    A(f"v_xor_b32 {v(7)}, {v(7)}, {v(8)}")
    A(f"v_lshrrev_b32 {v(8)}, 5, v0")
    A(f"v_lshlrev_b32 {v(8)}, 1, {v(8)}")
    A(f"v_xor_b32 {v(8)}, {v(8)}, {v(7)}")
    A(f"v_lshlrev_b32 {v(8)}, 4, {v(8)}")
    A(f"v_lshl_add_u32 {v(8)}, {v(6)}, 6, {v(8)}")
    A(f"v_bfe_u32 {v(9)}, v0, 4, 1")
    A(f"v_mul_u32_u24 {v(9)}, {QSEC}, {v(9)}")
    A(f"v_add_u32 {v(8)}, {v(8)}, {v(9)}")
    A(f"s_mul_i32 {s(sT0)}, {s(sP)}, {6 * QSEC}")
    A(f"s_add_u32 {s(sT1)}, {s(sI)}, 1")
    A(f"s_lshl_b32 {s(sT1)}, {s(sT1)}, 10")
    A(f"s_add_u32 s70, {s(sT0)}, {s(sT1)}")
    A(f"s_mul_i32 s71, {s(sSec1)}, {2 * QSEC}")
    A(f"s_mul_i32 s72, {s(sSec2)}, {2 * QSEC}")
    A(f"s_add_u32 s73, s71, {s(sT0)}")
    A("s_add_u32 s71, s71, s70")
    A("s_add_u32 s72, s72, s70")

    def put(accb, scale, sbase, pk):
        sel = "op_sel_hi:[1,0]"
        for i in range(0, 16, 2):
            A(f"v_pk_mul_f32 {v(accb + i, 2)}, {v(accb + i, 2)}, {v(scale, 2)} {sel}")
        for i in range(8):
            A(f"v_cvt_pk_bf16_f32 {v(pk + i)}, {v(accb + 2 * i)}, {v(accb + 2 * i + 1)}")
        A("s_mov_b32 exec_lo, 0")
        A(f"v_mov_b32 {v(pk + 6)}, 0")
        A(f"v_mov_b32 {v(pk + 7)}, 0")
        A("s_mov_b32 exec_lo, -1")
        A(f"v_add_u32 {v(W0)}, {sbase}, {v(8)}")
        A(f"v_xor_b32 {v(W1)}, 16, {v(W0)}")
        A(f"ds_write_b128 {v(W0)}, {v(pk, 4)}")
        A(f"ds_write_b128 {v(W1)}, {v(pk + 4, 4)}")

    put(acc, vRsQ, "s70", 100)
    put(acc + 16, vRs, "s71", 108)
    put(acc + 32, vRs, "s72", 116)
    A(f"s_cmp_eq_u32 {s(sHalo)}, 0")
    A("s_cbranch_scc1 ATT_NOHP")
    put(accH, vRsH, "s73", 124)
    A.label("ATT_NOHP")
    A("s_waitcnt lgkmcnt(0)")
    stamp(A, 5)
    A("s_barrier")
    stamp(A, 6)
    A.reset_counts()
    bC, bP = 12, 16
    A(f"v_lshrrev_b32 {v(9)}, 4, v0")
    A(f"v_lshlrev_b32 {v(10)}, 2, {v(9)}")
    A(f"v_sub_u32 {v(10)}, {v(6)}, {v(10)}")
    A(f"v_mov_b32 {v(11)}, {fbits(-1e9):#x}")
    A(f"s_or_b32 {s(sT0)}, {s(sRB)}, {s(sI)}")
    A(f"s_cmp_eq_u32 {s(sT0)}, 0")
    A(f"s_cselect_b32 s74, 1000, 0")
    for r in range(4):
        A(f"v_subrev_u32 {v(20)}, {r}, {v(10)}")
        A(f"v_cmp_gt_u32 vcc, 8, {v(20)}")
        A(f"v_cndmask_b32 {v(bC + r)}, {v(11)}, 0, vcc")
        A(f"v_add_u32 {v(20)}, s74, {v(20)}")
        A(f"v_cmp_gt_i32 vcc, -8, {v(20)}")
        A(f"v_cndmask_b32 {v(bP + r)}, {v(11)}, 0, vcc")
    A(f"v_xor_b32 {v(20)}, {v(9)}, {v(7)}")
    A(f"v_lshlrev_b32 {v(20)}, 4, {v(20)}")
    A(f"v_lshl_add_u32 {v(20)}, {v(6)}, 6, {v(20)}")
    A(f"s_mul_i32 {s(sT0)}, {s(sP)}, {6 * QSEC}")
    A(f"s_lshl_b32 {s(sT1)}, {s(sI)}, 10")
    A(f"s_add_u32 s75, {s(sT0)}, {s(sT1)}")
    A(f"v_add_u32 {v(20)}, s75, {v(20)}")
    A(f"v_and_b32 {v(21)}, 1, {v(9)}")
    A(f"v_lshlrev_b32 {v(21)}, 1, {v(21)}")
    A(f"v_xor_b32 {v(21)}, {v(21)}, {v(9)}")
    A(f"v_bfe_u32 {v(22)}, v0, 1, 1")
    A(f"v_xor_b32 {v(21)}, {v(21)}, {v(22)}")
    A(f"v_lshlrev_b32 {v(21)}, 4, {v(21)}")
    A(f"v_and_b32 {v(22)}, 1, v0")
    A(f"v_lshl_add_u32 {v(21)}, {v(22)}, 3, {v(21)}")
    A(f"v_lshrrev_b32 {v(22)}, 2, {v(6)}")
    A(f"v_lshl_add_u32 {v(22)}, {v(9)}, 2, {v(22)}")
    A(f"v_lshl_add_u32 {v(21)}, {v(22)}, 6, {v(21)}")
    A(f"v_add_u32 {v(21)}, s75, {v(21)}")
    A(f"v_xor_b32 {v(22)}, 32, {v(21)}")
    A(f"v_lshrrev_b32 {v(23)}, 1, {v(9)}")
    A(f"v_lshlrev_b32 {v(23)}, 10, {v(23)}")
    A(f"v_and_b32 {v(24)}, 1, {v(9)}")
    A(f"v_lshl_add_u32 {v(23)}, {v(24)}, 9, {v(23)}")
    A(f"v_lshl_add_u32 {v(23)}, {v(6)}, 4, {v(23)}")
    A(f"s_lshl_b32 {s(sT0)}, {s(sRB)}, 2")
    A(f"s_add_u32 {s(sT0)}, {s(sT0)}, {s(sI)}")
    A(f"s_mul_i32 {s(sT0)}, {s(sT0)}, {NKS}")
    A(f"s_lshl_b32 {s(sT1)}, {s(sSEL)}, 1")
    A(f"s_add_u32 {s(sT1)}, {s(sT1)}, {s(sP)}")
    A(f"s_lshl_b32 {s(sT1)}, {s(sT1)}, 1")
    A(f"s_add_u32 {s(sT0)}, {s(sT0)}, {s(sT1)}")
    A(f"s_lshl_b32 s76, {s(sT0)}, 10")
    B = {}
    for par in range(2):
        b = 40 + 60 * par
        Qf, Kp, Kc, Vf, Sp, Sc, M, M2, Pf, O = b, b + 4, b + 8, b + 12, b + 20, b + 24, b + 28, b + 30, b + 32, b + 36
        B[par] = (Qf, Kp, Kc, Vf, Sp, Sc, M, M2, Pf, O)
        po = par * QSEC
        A.ds(f"ds_read_b128 {v(Qf, 4)}, {v(20)} offset:{po + 1024}")
        A.ds(f"ds_read_b128 {v(Kp, 4)}, {v(20)} offset:{po + 2 * QSEC}")
        B[(par, "k")] = A.ds(f"ds_read_b128 {v(Kc, 4)}, {v(20)} offset:{po + 2 * QSEC + 1024}")
    for par in range(2):
        Qf, Kp, Kc, Vf, Sp, Sc, M, M2, Pf, O = B[par]
        po = par * QSEC + 4 * QSEC
        for dt in range(2):
            A.ds(f"ds_read_b64_tr_b16 {v(Vf + 4 * dt, 2)}, {v(21 + dt)} offset:{po}")
            B[(par, "v")] = A.ds(f"ds_read_b64_tr_b16 {v(Vf + 4 * dt + 2, 2)}, {v(21 + dt)} offset:{po + 1024}")
    for par in range(2):
        Qf, Kp, Kc, Vf, Sp, Sc, M, M2, Pf, O = B[par]
        A.wait_lg(B[(par, "k")])
        A(f"v_mfma_f32_16x16x32_bf16 {v(Sp, 4)}, {v(Kp, 4)}, {v(Qf, 4)}, {v(bP, 4)}")
        A(f"v_mfma_f32_16x16x32_bf16 {v(Sc, 4)}, {v(Kc, 4)}, {v(Qf, 4)}, {v(bC, 4)}")
    steps = {0: [], 1: []}
    for par in range(2):
        Qf, Kp, Kc, Vf, Sp, Sc, M, M2, Pf, O = B[par]
        o = steps[par]
        o.append(f"v_max3_f32 {v(M)}, {v(Sp)}, {v(Sp + 1)}, {v(Sp + 2)}")
        o.append(f"v_max3_f32 {v(M + 1)}, {v(Sc)}, {v(Sc + 1)}, {v(Sc + 2)}")
        o.append(f"v_max3_f32 {v(M)}, {v(M)}, {v(Sp + 3)}, {v(Sc + 3)}")
        o.append(f"v_max_f32 {v(M)}, {v(M)}, {v(M + 1)}")
        o.append(f"v_mov_b32 {v(M + 1)}, {v(M)}")
        o.append(f"v_permlane32_swap_b32 {v(M)}, {v(M + 1)}")
        o.append(f"v_max_f32 {v(M)}, {v(M)}, {v(M + 1)}")
        o.append(f"v_mov_b32 {v(M + 1)}, {v(M)}")
        o.append(f"v_permlane16_swap_b32 {v(M)}, {v(M + 1)}")
        o.append(f"v_max_f32 {v(M)}, {v(M)}, {v(M + 1)}")
        for i in range(0, 8, 2):
            o.append(f"v_pk_add_f32 {v(Sp + i, 2)}, {v(Sp + i, 2)}, {v(M, 2)} op_sel_hi:[1,0] neg_lo:[0,1] neg_hi:[0,1]")
        for i in range(8):
            o.append(f"v_exp_f32 {v(Sp + i)}, {v(Sp + i)}")
        for i in range(4):
            o.append(f"v_cvt_pk_bf16_f32 {v(Pf + i)}, {v(Sp + 2 * i)}, {v(Sp + 2 * i + 1)}")
        for dt in range(2):
            o.append(("lg", B[(par, "v")]))
            o.append(f"v_mfma_f32_16x16x32_bf16 {v(O + 4 * dt, 4)}, {v(Vf + 4 * dt, 4)}, {v(Pf, 4)}, 0")
        o.append(f"v_pk_add_f32 {v(Sp, 2)}, {v(Sp, 2)}, {v(Sp + 2, 2)}")
        o.append(f"v_pk_add_f32 {v(Sp + 4, 2)}, {v(Sp + 4, 2)}, {v(Sp + 6, 2)}")
        o.append(f"v_pk_add_f32 {v(Sp, 2)}, {v(Sp, 2)}, {v(Sp + 4, 2)}")
        o.append(f"v_add_f32 {v(M2)}, {v(Sp)}, {v(Sp + 1)}")
        o.append(f"v_mov_b32 {v(M2 + 1)}, {v(M2)}")
        o.append(f"v_permlane32_swap_b32 {v(M2)}, {v(M2 + 1)}")
        o.append(f"v_add_f32 {v(M2)}, {v(M2)}, {v(M2 + 1)}")
        o.append(f"v_mov_b32 {v(M2 + 1)}, {v(M2)}")
        o.append(f"v_permlane16_swap_b32 {v(M2)}, {v(M2 + 1)}")
        o.append(f"v_add_f32 {v(M2)}, {v(M2)}, {v(M2 + 1)}")
        o.append(f"v_rcp_f32 {v(M2)}, {v(M2)}")
        for i in range(0, 8, 2):
            o.append(f"v_pk_mul_f32 {v(O + i, 2)}, {v(O + i, 2)}, {v(M2, 2)} op_sel_hi:[1,0]")
        for i in range(4):
            o.append(f"v_cvt_pk_bf16_f32 {v(Pf + i)}, {v(O + 2 * i)}, {v(O + 2 * i + 1)}")
        o.append(("st", f"buffer_store_dwordx4 {v(Pf, 4)}, {v(23)}, {s(SRD_AO, 4)}, s76 offen offset:{256 * par}"))
    for x0, x1 in zip(steps[0], steps[1]):
        for x in (x0, x1):
            if isinstance(x, tuple):
                if x[0] == "lg":
                    A.wait_lg(x[1])
                else:
                    A.vmem(x[1])
            else:
                A(x)
    dump_stamps(A, 0, 16, sWAVE)
    A("s_endpgm")


def gen_k1():
    A = Asm()
    A.label(K1)
    A("s_cmp_ge_u32 s2, 256")
    A("s_cbranch_scc1 K1_END")
    stamp(A, 8)
    stamp(A, 0)
    A("s_load_dwordx4 s[4:7], s[0:1], 0")
    A("s_load_dwordx2 s[8:9], s[0:1], 16")
    A("s_load_dwordx4 s[12:15], s[0:1], 32")
    A("s_load_dwordx2 s[10:11], s[0:1], 48")
    A("s_load_dwordx2 s[16:17], s[0:1], 72")
    A("v_lshrrev_b32 v1, 6, v0")
    A("v_and_b32 v0, 63, v0")
    A(f"v_readfirstlane_b32 {s(sWAVE)}, v1")
    A("s_and_b32 s18, s2, 7")
    A("s_lshr_b32 s19, s2, 3")
    A(f"s_lshr_b32 {s(sRB)}, s18, 2")
    A(f"s_lshl_b32 {s(sRB)}, {s(sRB)}, 3")
    A(f"s_and_b32 {s(sT0)}, s19, 7")
    A(f"s_add_u32 {s(sRB)}, {s(sRB)}, {s(sT0)}")
    A("s_and_b32 s18, s18, 3")
    A(f"s_lshl_b32 {s(sSEL)}, s18, 1")
    A("s_lshr_b32 s19, s19, 3")
    A(f"s_and_b32 {s(sT0)}, s19, 1")
    A(f"s_add_u32 {s(sSEL)}, {s(sSEL)}, {s(sT0)}")
    A(f"s_and_b32 {s(sI)}, {s(sWAVE)}, 3")
    A(f"s_lshr_b32 {s(sP)}, {s(sWAVE)}, 2")
    A(f"s_xor_b32 {s(sIP)}, {s(sI)}, {s(sP)}")
    A("s_cmp_ge_u32 s19, 2")
    A("s_cbranch_scc1 FFN")
    gen_att(A)
    gen_ffn(A)
    A.label("K1_END")
    A("s_endpgm")
    return A.lines
```

```python
import sys
from asmgen import Asm, pad_hazards, render

NAME = "recurrent_scan__sliding_local_dilated__dense_activation_mish__prompt"
K1 = NAME + "_kernel"
K2 = NAME + "_k2_kernel"

S, D, F = 2048, 448, 1792
NKS = 144
AO_SIZE = 64 * NKS * 1024
WP_OFF = AO_SIZE
WP_SIZE = 7 * NKS * 2 * 1024
X_BYTES = S * D * 2
LN2 = 0x3F317218
LOG2E = 0x3FB8AA3B


def v(i, n=1):
    return f"v{i}" if n == 1 else f"v[{i}:{i + n - 1}]"


def a(i, n=1):
    return f"a{i}" if n == 1 else f"a[{i}:{i + n - 1}]"


def s(i, n=1):
    return f"s{i}" if n == 1 else f"s[{i}:{i + n - 1}]"


import os
DBG = int(os.environ.get("KDBG", "0"))
DBG_OFF = 32 << 20


def stamp(A, idx):
    if not DBG:
        return
    A("s_waitcnt lgkmcnt(0)")
    A(f"{'s_memrealtime' if idx >= 8 else 's_memtime'} s[{80 + 2 * idx}:{81 + 2 * idx}]")
    A("s_waitcnt lgkmcnt(0)")
    A.lg = []


def dump_stamps(A, kernel, wsptr, wave):
    if not DBG:
        return
    stamp(A, 7)
    stamp(A, 9)
    A(f"s_add_u32 s76, s{wsptr}, {DBG_OFF}")
    A(f"s_addc_u32 s77, s{wsptr + 1}, 0")
    A("s_mov_b32 s78, 0x100000")
    A("s_mov_b32 s79, 0x20000")
    A(f"s_add_u32 s75, s2, {256 * kernel}")
    A("s_lshl_b32 s75, s75, 3")
    A(f"s_add_u32 s75, s75, s{wave}")
    A("s_lshl_b32 s75, s75, 6")
    A("v_mov_b32 v0, 0")
    for i in range(10):
        A(f"v_mov_b32 v1, s{80 + 2 * i}")
        A(f"buffer_store_dword v1, v0, s[76:79], s75 offen offset:{4 * i}")
    A("s_waitcnt vmcnt(0)")


def srd(A, dst, ptr, size, off=0):
    if off:
        A(f"s_add_u32 {s(dst)}, {s(ptr)}, {off}")
        A(f"s_addc_u32 {s(dst + 1)}, {s(ptr + 1)}, 0")
    else:
        A(f"s_mov_b32 {s(dst)}, {s(ptr)}")
        A(f"s_mov_b32 {s(dst + 1)}, {s(ptr + 1)}")
    A(f"s_mov_b32 {s(dst + 2)}, {size}")
    A(f"s_mov_b32 {s(dst + 3)}, 0x20000")


def gen_k2():
    A = Asm()
    SRD_AO, SRD_WP, SRD_X, SRD_O = 12, 16, 20, 24
    sW, sA0, sA1, sX0, sX1 = 28, 29, 30, 31, 32
    WIN = 15
    WB = 16
    XR = 2
    A.label(K2)
    A("s_cmp_ge_u32 s2, 224")
    A("s_cbranch_scc1 K2_END")
    stamp(A, 8)
    stamp(A, 0)
    A("s_load_dwordx2 s[4:5], s[0:1], 0")
    A("s_load_dwordx2 s[6:7], s[0:1], 56")
    A("s_load_dwordx2 s[8:9], s[0:1], 72")
    A("v_lshrrev_b32 v10, 6, v0")
    A("v_and_b32 v0, 63, v0")
    A("v_readfirstlane_b32 s3, v10")
    A("v_lshlrev_b32 v1, 4, v0")
    A("s_and_b32 s33, s2, 7")
    A("s_lshr_b32 s34, s2, 3")
    A("s_mul_i32 s35, s34, 37")
    A("s_lshr_b32 s35, s35, 8")
    A("s_mul_i32 s36, s35, 7")
    A("s_sub_u32 s36, s34, s36")
    A("s_lshl_b32 s33, s33, 2")
    A("s_add_u32 s35, s33, s35")
    A("s_mul_i32 s37, s3, 37")
    A("s_cmp_eq_u32 s3, 0")
    A("s_cselect_b32 s38, 5, 0")
    A("s_cmp_ge_u32 s3, 2")
    A("s_cselect_b32 s39, 4, 5")
    A("s_sub_u32 s37, s37, s39")
    A("s_add_u32 s37, s37, s38")
    A(f"s_mul_i32 {s(sA0)}, s35, {2 * NKS}")
    A(f"s_add_u32 {s(sA0)}, {s(sA0)}, s37")
    A(f"s_lshl_b32 {s(sA0)}, {s(sA0)}, 10")
    A(f"s_add_u32 {s(sA1)}, {s(sA0)}, {NKS * 1024}")
    A(f"s_mul_i32 {s(sW)}, s36, {NKS}")
    A(f"s_add_u32 {s(sW)}, {s(sW)}, s37")
    A(f"s_lshl_b32 {s(sW)}, {s(sW)}, 11")
    A("s_lshl_b32 s40, s35, 6")
    A("s_lshl_b32 s41, s3, 4")
    A("s_add_u32 s40, s40, s41")
    A(f"s_mul_i32 {s(sX0)}, s40, 896")
    A("s_lshl_b32 s41, s36, 7")
    A(f"s_add_u32 {s(sX0)}, {s(sX0)}, s41")
    A(f"s_add_u32 {s(sX1)}, {s(sX0)}, {8 * 896}")
    A("v_lshrrev_b32 v11, 3, v0")
    A("v_and_b32 v12, 7, v0")
    A("v_mul_u32_u24 v10, 896, v11")
    A("v_lshl_add_u32 v10, v12, 4, v10")
    A("s_waitcnt lgkmcnt(0)")
    srd(A, SRD_AO, 8, AO_SIZE)
    srd(A, SRD_WP, 8, WP_SIZE, WP_OFF)
    srd(A, SRD_X, 4, X_BYTES)
    srd(A, SRD_O, 6, X_BYTES)
    stamp(A, 1)
    A("s_cmp_eq_u32 s3, 0")
    A("s_cbranch_scc1 K2_W0")
    A("s_cmp_eq_u32 s3, 1")
    A("s_cbranch_scc1 K2_W1")

    def stream(n):
        A.reset_counts()
        st = {"a": 0, "w": 0}
        toks = {}

        def issue(k):
            base = WB + 16 * (k % WIN)
            oa = k * 1024 - st["a"]
            if oa > 3072:
                A(f"s_add_u32 {s(sA0)}, {s(sA0)}, {oa}")
                A(f"s_add_u32 {s(sA1)}, {s(sA1)}, {oa}")
                st["a"] += oa
                oa = 0
            ow = k * 2048 - st["w"]
            if ow + 1024 > 3072:
                A(f"s_add_u32 {s(sW)}, {s(sW)}, {ow}")
                st["w"] += ow
                ow = 0
            A.vmem(f"buffer_load_dwordx4 {v(base, 4)}, v1, {s(SRD_AO, 4)}, {s(sA0)} offen offset:{oa}")
            A.vmem(f"buffer_load_dwordx4 {v(base + 8, 4)}, v1, {s(SRD_WP, 4)}, {s(sW)} offen offset:{ow}")
            A.vmem(f"buffer_load_dwordx4 {v(base + 4, 4)}, v1, {s(SRD_AO, 4)}, {s(sA1)} offen offset:{oa}")
            toks[k] = A.vmem(f"buffer_load_dwordx4 {v(base + 12, 4)}, v1, {s(SRD_WP, 4)}, {s(sW)} offen offset:{ow + 1024}")

        issue(0)
        A.vmem(f"buffer_load_dwordx4 {v(XR, 4)}, v10, {s(SRD_X, 4)}, {s(sX0)} offen")
        A.vmem(f"buffer_load_dwordx4 {v(XR + 4, 4)}, v10, {s(SRD_X, 4)}, {s(sX1)} offen")
        for k in range(1, min(WIN, n)):
            issue(k)
        for k in range(n):
            base = WB + 16 * (k % WIN)
            A.wait_vm(toks[k])
            if k == 0:
                stamp(A, 2)
            if k == 16:
                stamp(A, 3)
            for th in range(2):
                for ch in range(2):
                    acc = a(16 * (2 * th + ch), 16)
                    c = "0" if k == 0 else acc
                    A(f"v_mfma_f32_32x32x16_bf16 {acc}, {v(base + 8 + 4 * ch, 4)}, {v(base + 4 * th, 4)}, {c}")
            if k + WIN < n:
                issue(k + WIN)

    stream(37)
    A("s_branch K2_RED")
    A.label("K2_W0")
    stream(32)
    A("s_branch K2_RED")
    A.label("K2_W1")
    stream(38)
    A.label("K2_RED")
    A.reset_counts()
    stamp(A, 4)
    A("v_and_b32 v11, 15, v0")
    A("v_lshlrev_b32 v11, 1, v11")
    A("v_bfe_u32 v12, v0, 4, 1")
    A("v_add_u32 v11, v11, v12")
    A("v_lshlrev_b32 v11, 8, v11")
    A("v_lshrrev_b32 v12, 5, v0")
    A("v_and_b32 v13, 7, v0")
    A("v_xor_b32 v12, v12, v13")
    A("v_lshl_add_u32 v11, v12, 4, v11")
    A("s_lshl_b32 s41, s3, 14")
    A("v_add_u32 v16, s41, v11")
    for g in range(1, 4):
        A(f"v_xor_b32 v{16 + g}, {32 * g}, v16")
    for th in range(2):
        for ch in range(2):
            for g in range(4):
                A.ds(f"ds_write_b128 v{16 + g}, {a(16 * (2 * th + ch) + 4 * g, 4)} offset:{th * 8192 + ch * 128}")
    A("v_lshrrev_b32 v11, 3, v0")
    A("v_and_b32 v12, 7, v0")
    A("v_lshlrev_b32 v12, 1, v12")
    A("v_lshrrev_b32 v13, 1, v11")
    A("v_xor_b32 v12, v12, v13")
    A("v_lshlrev_b32 v12, 4, v12")
    A("v_lshl_add_u32 v12, v11, 8, v12")
    A("s_lshl_b32 s41, s3, 12")
    A("v_add_u32 v20, s41, v12")
    A("v_xor_b32 v21, 16, v20")
    A("v_xor_b32 v22, 64, v20")
    A("v_xor_b32 v23, 80, v20")
    A(f"v_mov_b32 v24, {LN2:#x}")
    A("v_mov_b32 v26, 1.0")
    A.wait_lg_all()
    stamp(A, 5)
    A("s_barrier")
    stamp(A, 6)
    rd = {}
    for j in range(2):
        for src in range(4):
            for e in range(2):
                b = 32 + 40 * j + 8 * src + 4 * e
                rd[(j, src, e)] = A.ds(f"ds_read_b128 {v(b, 4)}, v{20 + 2 * j + e} offset:{src * 16384 + j * 2048}")
    A.wait_vm_all()
    for j in range(2):
        b = 32 + 40 * j
        Sx, Y1, Y2, Y3, T = b, b + 8, b + 16, b + 24, b + 32
        A.wait_lg(rd[(j, 3, 1)])
        for i in range(0, 8, 2):
            A(f"v_pk_add_f32 {v(Y1 + i, 2)}, {v(Y1 + i, 2)}, {v(Y2 + i, 2)}")
        for i in range(0, 8, 2):
            A(f"v_pk_add_f32 {v(Y1 + i, 2)}, {v(Y1 + i, 2)}, {v(Y3 + i, 2)}")
        for i in range(8):
            A(f"v_exp_f32 {v(T + i)}, -{v(Y1 + i)}")
        for i in range(0, 8, 2):
            A(f"v_pk_mul_f32 {v(Sx + i, 2)}, {v(Sx + i, 2)}, {v(Y1 + i, 2)}")
        for i in range(0, 8, 2):
            A(f"v_pk_add_f32 {v(T + i, 2)}, {v(T + i, 2)}, v[26:27] op_sel_hi:[1,0]")
        for i in range(8):
            A(f"v_rcp_f32 {v(T + i)}, {v(T + i)}")
        for i in range(4):
            A(f"v_lshlrev_b32 {v(Y2 + 2 * i)}, 16, {v(XR + 4 * j + i)}")
            A(f"v_and_b32 {v(Y2 + 2 * i + 1)}, 0xffff0000, {v(XR + 4 * j + i)}")
        for i in range(0, 8, 2):
            A(f"v_pk_mul_f32 {v(Sx + i, 2)}, {v(Sx + i, 2)}, {v(T + i, 2)}")
        for i in range(0, 8, 2):
            A(f"v_pk_fma_f32 {v(Sx + i, 2)}, {v(Sx + i, 2)}, v[24:25], {v(Y2 + i, 2)} op_sel_hi:[1,0,1]")
        for i in range(4):
            A(f"v_cvt_pk_bf16_f32 {v(T + i)}, {v(Sx + 2 * i)}, {v(Sx + 2 * i + 1)}")
        A.vmem(f"buffer_store_dwordx4 {v(T, 4)}, v10, {s(SRD_O, 4)}, {s(sX0 if j == 0 else sX1)} offen")
    dump_stamps(A, 1, 8, 3)
    A.label("K2_END")
    A("s_endpgm")
    A.label("CODE_END")
    return A.lines


def kd(name, vgpr, accum, sgpr=102):
    return f""".section .rodata,"a"
.p2align 6
.amdhsa_kernel {name}
  .amdhsa_next_free_vgpr {vgpr}
  .amdhsa_next_free_sgpr {sgpr}
  .amdhsa_accum_offset {accum}
  .amdhsa_group_segment_fixed_size 0
  .amdhsa_kernarg_size 80
  .amdhsa_user_sgpr_count 2
  .amdhsa_user_sgpr_kernarg_segment_ptr 1
  .amdhsa_system_sgpr_workgroup_id_x 1
.end_amdhsa_kernel
"""


def func(name, lines):
    return f".text\n.globl {name}\n.p2align 8\n.type {name},@function\n" + render(pad_hazards(lines))


def build(with_k1=True):
    import gen_k1
    out = "; Two launches: K1 = layernorm statistics, QKV + windowed attention, FFN1 + mish, weight packing; K2 = output GEMMs + gate\n"
    out += f"; @launch kernel={K1} grid=(256,1,1) block=(512,1,1) lds={gen_k1.LDS_BYTES}\n"
    out += f"; @launch kernel={K2} grid=(224,1,1) block=(256,1,1) lds=65536\n"
    out += '.amdgcn_target "amdgcn-amd-amdhsa--gfx950"\n'
    out += func(K1, gen_k1.gen_k1())
    out += func(K2, gen_k2())
    out += kd(K1, 256, 256)
    out += kd(K2, 320, 256)
    return out


if __name__ == "__main__":
    path = sys.argv[1] if len(sys.argv) > 1 else f"cdna_kernels/{NAME}.s"
    open(path, "w").write(build())
    print("wrote", path)
```

```python
from asmgen import Asm
from gen import DBG
import os
PREF = int(os.environ.get('KPREF', '0'))
from gen import v, a, s, srd, stamp, dump_stamps, K1, NKS, AO_SIZE, WP_OFF, WP_SIZE, X_BYTES, LOG2E

LDS_BYTES = 163840
SRD_X, SRD_W, SRD_AO, SRD_PP, SRD_WP, SRD_B = 20, 24, 28, 32, 36, 40
sWAVE, sRB, sSEL, sI, sP, sIP = 3, 44, 45, 46, 47, 48
sT0, sT1 = 49, 50
OOB = 0x40000000
ONES = 0x3F803F80


def fbits(x):
    import struct
    return struct.unpack("<I", struct.pack("<f", x))[0]


def dma(A, voff, srd_, gbase, gimm, lbase, limm):
    A(f"s_add_u32 m0, {s(lbase)}, {limm}")
    A(f"s_add_u32 {s(sT0)}, {s(gbase)}, {gimm}")
    return A.vmem(f"buffer_load_dwordx4 {v(voff)}, {s(srd_, 4)}, {s(sT0)} offen lds")


def x_dma_voff(A, dst, t0, t1):
    A(f"v_lshrrev_b32 {v(t0)}, 4, v0")
    A(f"s_and_b32 {s(sT0)}, {s(sWAVE)}, 1")
    A(f"s_lshl_b32 {s(sT0)}, {s(sT0)}, 2")
    A(f"v_add_u32 {v(t0)}, {s(sT0)}, {v(t0)}")
    A(f"v_and_b32 {v(t1)}, 7, v0")
    A(f"v_xor_b32 {v(t0)}, {v(t0)}, {v(t1)}")
    A(f"v_lshrrev_b32 {v(t1)}, 3, v0")
    A(f"v_mul_u32_u24 {v(t1)}, 896, {v(t1)}")
    A(f"v_lshl_add_u32 {v(dst)}, {v(t0)}, 4, {v(t1)}")


def x_read_addr(A, dst, t0, t1, t2, base):
    A(f"v_and_b32 {v(t0)}, 15, v0")
    A(f"v_lshlrev_b32 {v(t0)}, 1, {v(t0)}")
    A(f"v_bfe_u32 {v(t1)}, v0, 4, 1")
    A(f"v_add_u32 {v(t0)}, {v(t0)}, {v(t1)}")
    A(f"s_lshl_b32 {s(sT0)}, {s(sI)}, 5")
    A(f"v_add_u32 {v(t0)}, {s(sT0)}, {v(t0)}")
    A(f"v_lshlrev_b32 {v(t0)}, 7, {v(t0)}")
    A(f"v_and_b32 {v(t1)}, 3, v0")
    A(f"v_bfe_u32 {v(t2)}, v0, 3, 1")
    A(f"v_lshl_add_u32 {v(t1)}, {v(t2)}, 2, {v(t1)}")
    A(f"v_lshrrev_b32 {v(t2)}, 5, v0")
    A(f"s_lshl_b32 {s(sT0)}, {s(sIP)}, 1")
    A(f"v_add_u32 {v(t2)}, {s(sT0)}, {v(t2)}")
    A(f"v_xor_b32 {v(t1)}, {v(t1)}, {v(t2)}")
    A(f"v_lshl_add_u32 {v(t0)}, {v(t1)}, 4, {v(t0)}")
    A(f"v_add_u32 {v(dst)}, {base}, {v(t0)}")
    for q in range(1, 4):
        A(f"v_xor_b32 {v(dst + q)}, {32 * q}, {v(dst)}")


def tr_lane_part(A, dst, t0, t1, colbase, row_hh_shift):
    A(f"v_lshrrev_b32 {v(t0)}, 5, v0")
    A(f"v_lshlrev_b32 {v(t0)}, {row_hh_shift}, {v(t0)}")
    A(f"v_bfe_u32 {v(t1)}, v0, 2, 2")
    A(f"v_add_u32 {v(t0)}, {v(t0)}, {v(t1)}")
    A(f"v_lshlrev_b32 {v(t0)}, 7, {v(t0)}")
    A(f"v_bfe_u32 {v(t1)}, v0, 4, 1")
    A(f"v_lshlrev_b32 {v(t1)}, 5, {v(t1)}")
    A(f"v_and_b32 {v(dst)}, 3, v0")
    A(f"v_lshl_add_u32 {v(t1)}, {v(dst)}, 3, {v(t1)}")
    A(f"v_add_u32 {v(t1)}, {colbase}, {v(t1)}")
    A(f"v_bfe_u32 {v(dst)}, v0, 3, 1")
    A(f"v_lshlrev_b32 {v(dst)}, 6, {v(dst)}")
    A(f"v_xor_b32 {v(t1)}, {v(t1)}, {v(dst)}")
    A(f"v_add_u32 {v(dst)}, {v(t0)}, {v(t1)}")


def split_neg_mean_sigma(A, sq, t, augB, rs_dst, rs_scale, with_sigma):
    m, e2, ve, pk, hi = t, t + 1, t + 2, t + 3, t + 4
    A(f"v_mul_f32 {v(m)}, {fbits(-1.0 / 448):#x}, {v(sq)}")
    A(f"v_mul_f32 {v(e2)}, {fbits(1.0 / 448):#x}, {v(sq + 1)}")
    A(f"v_fma_f32 {v(ve)}, -{v(m)}, {v(m)}, {v(e2)}")
    A(f"v_max_f32 {v(ve)}, 0, {v(ve)}")
    A(f"v_add_f32 {v(ve)}, {fbits(1e-5):#x}, {v(ve)}")
    A(f"v_rsq_f32 {v(e2)}, {v(ve)}")
    A(f"v_cvt_pk_bf16_f32 {v(augB)}, {v(m)}, {v(m)}")
    A(f"v_and_b32 {v(hi)}, 0xffff0000, {v(augB)}")
    A(f"v_sub_f32 {v(m)}, {v(m)}, {v(hi)}")
    if with_sigma:
        A(f"v_mul_f32 {v(ve)}, {v(ve)}, {v(e2)}")
        A(f"v_cvt_pk_bf16_f32 {v(pk)}, {v(ve)}, {v(ve)}")
        A(f"v_and_b32 {v(hi)}, 0xffff0000, {v(pk)}")
        A(f"v_sub_f32 {v(ve)}, {v(ve)}, {v(hi)}")
        A(f"v_cvt_pk_bf16_f32 {v(augB + 1)}, {v(m)}, {v(hi)}")
        A(f"v_cvt_pk_bf16_f32 {v(augB + 2)}, {v(ve)}, 0")
    else:
        A(f"v_cvt_pk_bf16_f32 {v(augB + 1)}, {v(m)}, 0")
        A(f"v_mov_b32 {v(augB + 2)}, 0")
    A(f"v_mov_b32 {v(augB + 3)}, 0")
    if rs_scale is None:
        A(f"v_mov_b32 {v(rs_dst)}, {v(e2)}")
    else:
        A(f"v_mul_f32 {v(rs_dst)}, {rs_scale:#x}, {v(e2)}")
    A("s_mov_b32 exec_lo, 0")
    for k in range(3):
        A(f"v_mov_b32 {v(augB + k)}, 0")
    A("s_mov_b32 exec_lo, -1")


def colsum_ops(part, augA, bias):
    o = []
    o.append(f"v_pk_add_f32 {v(part, 2)}, {v(part, 2)}, {v(part + 4, 2)}")
    o.append(f"v_pk_add_f32 {v(part + 2, 2)}, {v(part + 2, 2)}, {v(part + 6, 2)}")
    o.append(f"v_pk_add_f32 {v(part, 2)}, {v(part, 2)}, {v(part + 2, 2)}")
    o.append(f"v_add_f32 {v(part)}, {v(part)}, {v(part + 1)}")
    o.append(f"v_cvt_pk_bf16_f32 {v(part + 1)}, {v(part)}, {v(part)}")
    o.append(f"v_and_b32 {v(part + 2)}, 0xffff0000, {v(part + 1)}")
    o.append(f"v_sub_f32 {v(part)}, {v(part)}, {v(part + 2)}")
    o.append(f"v_and_b32 {v(part + 1)}, 0xffff, {v(part + 1)}")
    o.append(f"v_cvt_pk_bf16_f32 {v(augA)}, {v(part + 2)}, {v(part)}")
    if bias is not None:
        o.append(f"v_lshl_or_b32 {v(augA + 1)}, {v(bias)}, 16, {v(part + 1)}")
        o.append(f"v_mov_b32 {v(augA + 2)}, {v(bias)}")
    else:
        o.append(f"v_mov_b32 {v(augA + 1)}, {v(part + 1)}")
    return o


def gen_ffn(A):
    WA, X0, P1, MISC = 0, 57344, 73728, 155648
    CSP, STP = MISC, MISC + 2048
    vXoff, vWoff, vXrd, vWrd, vSt, vRs, vBias = 1, 2, 4, 8, 12, 13, 14
    augB, augA, vCs, vSum, vOnes, vHalf, vOne = 18, 22, 26, 28, 31, 32, 34
    vCsW, vCsR = 27, 30
    WB, accM, accE, T, U, P, PART, TMP = 36, 52, 68, 84, 92, 100, 108, 116
    X = 128
    sXg, sXl, sWg, sWl, sAct, sRound, sBuf, sOdd, sLine = 52, 53, 54, 55, 56, 57, 58, 59, 60
    sPPg, sPPl, sPPd, sActive, sActN = 61, 62, 63, 64, 65
    A.reset_counts()
    A.label("FFN")
    A(f"s_and_b32 {s(sOdd)}, {s(sSEL)}, 1")
    A(f"s_mul_i32 {s(sLine)}, {s(sSEL)}, 7")
    A(f"s_lshr_b32 {s(sLine)}, {s(sLine)}, 1")
    A(f"s_lshl_b32 {s(sXg)}, {s(sRB)}, 7")
    A(f"s_lshl_b32 {s(sT0)}, {s(sWAVE)}, 4")
    A(f"s_add_u32 {s(sXg)}, {s(sXg)}, {s(sT0)}")
    A(f"s_mul_i32 {s(sXg)}, {s(sXg)}, 896")
    A(f"s_lshl_b32 {s(sXl)}, {s(sWAVE)}, 11")
    A(f"s_lshl_b32 {s(sWl)}, {s(sWAVE)}, 10")
    A(f"s_add_u32 {s(sT0)}, {s(sLine)}, {s(sOdd)}")
    A(f"s_lshl_b32 {s(sT0)}, {s(sT0)}, 7")
    A(f"s_mul_i32 {s(sWg)}, {s(sWAVE)}, {8 * 3584}")
    A(f"s_add_u32 {s(sWg)}, {s(sWg)}, {s(sT0)}")
    x_dma_voff(A, vXoff, TMP, TMP + 1)
    A(f"v_bfe_u32 {v(TMP)}, v0, 4, 1")
    A(f"v_lshlrev_b32 {v(TMP)}, 2, {v(TMP)}")
    A(f"v_and_b32 {v(TMP + 1)}, 7, v0")
    A(f"v_xor_b32 {v(TMP)}, {v(TMP)}, {v(TMP + 1)}")
    A(f"v_lshlrev_b32 {v(TMP + 4)}, 4, {v(TMP)}")
    A(f"v_lshrrev_b32 {v(TMP + 1)}, 3, v0")
    A(f"v_mul_u32_u24 {v(TMP + 1)}, 3584, {v(TMP + 1)}")
    A(f"v_add_u32 {v(vWoff)}, {v(TMP + 4)}, {v(TMP + 1)}")
    A("s_waitcnt lgkmcnt(0)")
    srd(A, SRD_X, 4, X_BYTES)
    srd(A, SRD_W, 12, 448 * 1792 * 2)

    def xdma(c, slot):
        t0 = dma(A, vXoff, SRD_X, sXg, 128 * c, sXl, slot)
        t1 = dma(A, vXoff, SRD_X, sXg, 128 * c + 7168, sXl, slot + 1024)
        return t1

    def wdma(c, buf):
        return dma(A, vWoff, SRD_W, sWg, c * 64 * 3584, sWl, buf + 8192 * c)

    xt, wt = {}, {}
    xt[0] = xdma(0, X0)
    wt[0] = wdma(0, WA)
    A(f"s_lshl_b32 {s(sT0)}, {s(sRB)}, 3")
    A(f"s_add_u32 {s(sT0)}, {s(sT0)}, {s(sSEL)}")
    A(f"s_lshl_b32 {s(sT0)}, {s(sT0)}, 3")
    A(f"s_add_u32 s70, {s(sT0)}, {s(sWAVE)}")
    A("s_mul_hi_u32 s71, s70, 29826162")
    A(f"s_mul_i32 s72, s71, {NKS}")
    A("s_sub_u32 s72, s70, s72")
    A(f"s_mul_i32 {s(sPPd)}, s71, {NKS}")
    A(f"s_add_u32 {s(sPPd)}, {s(sPPd)}, s72")
    A(f"s_lshl_b32 {s(sPPd)}, {s(sPPd)}, 11")
    A("s_lshr_b32 s73, s72, 1")
    A("s_mul_i32 s73, s73, 28")
    A("s_and_b32 s74, s72, 1")
    A("s_lshl_b32 s75, s74, 4")
    A("s_add_u32 s73, s73, s75")
    A("s_sub_u32 s75, s72, 32")
    A("s_lshl_b32 s75, s75, 4")
    A("s_cmp_lt_u32 s72, 32")
    A("s_cselect_b32 s73, s73, s75")
    A("s_cselect_b32 s76, s8, s10")
    A("s_cselect_b32 s77, s9, s11")
    A(f"s_mov_b32 s78, {1792 * 448 * 2}")
    A(f"s_cselect_b32 s78, {448 * 448 * 2}, s78")
    A("s_cselect_b32 s79, 1, 0")
    A(f"s_mov_b32 {s(SRD_PP)}, s76")
    A(f"s_mov_b32 {s(SRD_PP + 1)}, s77")
    A(f"s_mov_b32 {s(SRD_PP + 2)}, s78")
    A(f"s_mov_b32 {s(SRD_PP + 3)}, 0x20000")
    A(f"s_mul_i32 {s(sPPg)}, s73, 896")
    A("s_lshl_b32 s75, s71, 7")
    A(f"s_add_u32 {s(sPPg)}, {s(sPPg)}, s75")
    A("s_cmp_ge_u32 s70, 1008")
    A(f"s_cselect_b32 {s(sPPg)}, {OOB}, {s(sPPg)}")
    A(f"s_cselect_b32 {s(sPPd)}, {OOB}, {s(sPPd)}")
    A(f"v_lshrrev_b32 {v(TMP)}, 3, v0")
    A(f"v_and_b32 {v(TMP + 1)}, 3, {v(TMP)}")
    A(f"v_lshrrev_b32 {v(TMP + 2)}, 2, {v(TMP)}")
    A(f"v_lshl_add_u32 {v(TMP + 1)}, {v(TMP + 2)}, 3, {v(TMP + 1)}")
    A("s_cmp_eq_u32 s79, 1")
    A("s_cselect_b64 vcc, -1, 0")
    A("s_cselect_b32 s75, 4, 8")
    A(f"v_cndmask_b32 {v(TMP)}, {v(TMP)}, {v(TMP + 1)}, vcc")
    A(f"v_mul_u32_u24 {v(TMP + 1)}, 896, {v(TMP)}")
    A(f"v_add_u32 {v(TMP + 1)}, {v(TMP + 1)}, {v(TMP + 4)}")
    A("s_mul_i32 s75, s75, 896")
    A(f"v_add_u32 {v(TMP + 3)}, s75, {v(TMP + 1)}")
    A("s_and_b32 s75, s79, s74")
    A(f"s_mul_i32 s75, s75, {OOB}")
    A(f"v_mul_lo_u32 {v(TMP + 2)}, {v(TMP + 2)}, s75")
    A(f"v_add_u32 {v(TMP + 3)}, {v(TMP + 3)}, {v(TMP + 2)}")
    A(f"s_lshl_b32 {s(sPPl)}, {s(sWAVE)}, 11")
    PPS = X0 + 5 * 16384
    dma(A, TMP + 1, SRD_PP, sPPg, 0, sPPl, PPS)
    ppt = dma(A, TMP + 3, SRD_PP, sPPg, 0, sPPl, PPS + 1024)
    for c in range(1, 5):
        xt[c] = xdma(c, X0 + 16384 * c)
        wt[c] = wdma(c, WA)
    wt[5] = wdma(5, WA)
    wt[6] = wdma(6, WA)
    srd(A, SRD_AO, 16, AO_SIZE)
    srd(A, SRD_WP, 16, WP_SIZE, WP_OFF)
    srd(A, SRD_B, 14, 1792 * 2)
    A(f"v_and_b32 {v(TMP)}, 31, v0")
    A(f"v_lshlrev_b32 {v(TMP)}, 1, {v(TMP)}")
    for r in range(4):
        A(f"s_add_u32 {s(sT0)}, {s(sOdd)}, {r}")
        A(f"s_and_b32 {s(sT0)}, {s(sT0)}, 3")
        A(f"s_add_u32 {s(sT0)}, {s(sT0)}, {s(sLine)}")
        A(f"s_lshl_b32 {s(sT0)}, {s(sT0)}, 7")
        A(f"s_lshl_b32 {s(sT1)}, {s(sP)}, 6")
        A(f"s_add_u32 {s(sT0)}, {s(sT0)}, {s(sT1)}")
        bt = A.vmem(f"buffer_load_ushort {v(vBias + r)}, {v(TMP)}, {s(SRD_B, 4)}, {s(sT0)} offen")
    A(f"v_lshlrev_b32 {v(vSt)}, 4, v0")
    x_read_addr(A, vXrd, TMP, TMP + 1, TMP + 2, X0)
    A(f"s_lshl_b32 {s(sT1)}, {s(sP)}, 6")
    tr_lane_part(A, TMP + 5, TMP, TMP + 1, s(sT1), 3)
    for q in range(4):
        A(f"s_xor_b32 {s(sT0)}, {s(sIP)}, {q}")
        A(f"s_lshl_b32 {s(sT0)}, {s(sT0)}, 11")
        A(f"v_add_u32 {v(vWrd + q)}, {s(sT0)}, {v(TMP + 5)}")
    A(f"v_mov_b32 {v(vOnes)}, {ONES:#x}")
    A(f"v_mov_b32 {v(vHalf)}, 0.5")
    A(f"v_mov_b32 {v(vOne)}, 1.0")
    A(f"v_mov_b32 {v(vSum)}, 0")
    A(f"v_mov_b32 {v(vSum + 1)}, 0")
    A(f"v_mov_b32 {v(vCs)}, 0")
    A(f"v_mov_b32 {v(augA + 3)}, 0")
    A(f"v_and_b32 {v(TMP)}, 31, v0")
    A(f"v_lshlrev_b32 {v(TMP)}, 5, {v(TMP)}")
    A(f"s_lshl_b32 {s(sT0)}, {s(sP)}, 10")
    A(f"s_add_u32 {s(sT0)}, {s(sT0)}, {CSP}")
    A(f"v_add_u32 {v(vCsR)}, {s(sT0)}, {v(TMP)}")
    A(f"v_lshrrev_b32 {v(TMP)}, 5, v0")
    A(f"s_lshl_b32 {s(sT0)}, {s(sI)}, 1")
    A(f"v_add_u32 {v(TMP)}, {s(sT0)}, {v(TMP)}")
    A(f"v_lshl_add_u32 {v(vCsW)}, {v(TMP)}, 2, {v(vCsR)}")
    tr_lane_part(A, TMP + 5, TMP, TMP + 1, "0", 2)
    A(f"s_add_u32 {s(sT0)}, {s(sPPl)}, {PPS}")
    A(f"v_add_u32 {v(TMP + 5)}, {s(sT0)}, {v(TMP + 5)}")
    A(f"v_xor_b32 {v(TMP + 6)}, 64, {v(TMP + 5)}")
    A.wait_vm(ppt)
    A.ds(f"ds_read_b64_tr_b16 {v(T, 2)}, {v(TMP + 5)}")
    A.ds(f"ds_read_b64_tr_b16 {v(T + 2, 2)}, {v(TMP + 5)} offset:1024")
    A.ds(f"ds_read_b64_tr_b16 {v(T + 4, 2)}, {v(TMP + 6)}")
    A.ds(f"ds_read_b64_tr_b16 {v(T + 6, 2)}, {v(TMP + 6)} offset:1024")
    A.wait_lg_all()
    A.vmem(f"buffer_store_dwordx4 {v(T, 4)}, {v(vSt)}, {s(SRD_WP, 4)}, {s(sPPd)} offen")
    A.vmem(f"buffer_store_dwordx4 {v(T + 4, 4)}, {v(vSt)}, {s(SRD_WP, 4)}, {s(sPPd)} offen offset:1024")
    A(f"s_add_u32 {s(sT0)}, {s(sOdd)}, 1")
    A(f"s_and_b32 {s(sT0)}, {s(sT0)}, 3")
    A(f"s_sub_u32 {s(sT0)}, {s(sT0)}, {s(sOdd)}")
    A(f"s_lshl_b32 {s(sT0)}, {s(sT0)}, 7")
    A(f"s_add_u32 s66, {s(sWg)}, {s(sT0)}")
    A(f"s_lshl_b32 {s(sT0)}, {s(sRB)}, 2")
    A(f"s_add_u32 {s(sT0)}, {s(sT0)}, {s(sI)}")
    A(f"s_mul_i32 s67, {s(sT0)}, {NKS}")
    A("s_add_u32 s67, s67, 32")
    A(f"s_lshl_b32 {s(sT0)}, {s(sP)}, 1")
    A(f"s_add_u32 s67, s67, {s(sT0)}")

    def act_off(dst, r_expr_sgpr):
        A(f"s_add_u32 {s(sT0)}, {s(sOdd)}, {r_expr_sgpr}")
        A(f"s_and_b32 {s(sT0)}, {s(sT0)}, 3")
        A(f"s_add_u32 {s(sT0)}, {s(sT0)}, {s(sLine)}")
        A(f"s_lshl_b32 {s(sT0)}, {s(sT0)}, 2")
        A(f"s_add_u32 {s(sT0)}, {s(sT0)}, s67")
        A(f"s_lshl_b32 {s(dst)}, {s(sT0)}, 10")

    p1 = {}
    for c in range(7):
        A.wait_vm(xt[c])
        A.wait_vm(wt[c])
        A.wait_lg_all()
        A("s_barrier")
        if c == 0:
            stamp(A, 1)
        if c == 1:
            xt[5] = xdma(5, X0 + 5 * 16384)
            xt[6] = xdma(6, X0)
        if c >= 2 and c <= 5:
            for cc in ((0, 1), (2, 3), (4, 5), (6,))[c - 2]:
                p1[cc] = dma(A, vWoff, SRD_W, 66, cc * 64 * 3584, sWl, P1 + 8192 * cc)
        if c > 0:
            delta = 16384 if c < 6 else -5 * 16384
            for q in range(4):
                A(f"v_add_u32 {v(vXrd + q)}, {delta}, {v(vXrd + q)}")
        rx, rw = {}, {}
        for q in range(4):
            rx[q] = A.ds(f"ds_read_b128 {v(X + 16 * c + 4 * q, 4)}, {v(vXrd + q)}")
            A.ds(f"ds_read_b64_tr_b16 {v(WB + 4 * q, 2)}, {v(vWrd + q)} offset:{8192 * c}")
            rw[q] = A.ds(f"ds_read_b64_tr_b16 {v(WB + 4 * q + 2, 2)}, {v(vWrd + q)} offset:{8192 * c + 512}")
        for q in range(4):
            A.wait_lg(rw[q])
            xr = X + 16 * c + 4 * q
            cin = "0" if (c == 0 and q == 0) else v(accM, 16)
            A(f"v_mfma_f32_32x32x16_bf16 {v(accM, 16)}, {v(WB + 4 * q, 4)}, {v(xr, 4)}, {cin}")
            if q == 0:
                for k in range(4):
                    A(f"v_dot2_f32_bf16 {v(vCs)}, {v(WB + k)}, {v(vOnes)}, {v(vCs)}")
            if q in (0, 2):
                for k in range(4):
                    A(f"v_dot2_f32_bf16 {v(vSum)}, {v(xr + k)}, {v(vOnes)}, {v(vSum)}")
                    A(f"v_dot2_f32_bf16 {v(vSum + 1)}, {v(xr + k)}, {v(xr + k)}, {v(vSum + 1)}")
    A(f"v_and_b32 {v(TMP)}, 31, v0")
    A(f"v_lshlrev_b32 {v(TMP)}, 5, {v(TMP)}")
    A(f"s_lshl_b32 {s(sT0)}, {s(sI)}, 10")
    A(f"s_add_u32 {s(sT0)}, {s(sT0)}, {STP}")
    A(f"v_add_u32 {v(TMP)}, {s(sT0)}, {v(TMP)}")
    A(f"v_lshrrev_b32 {v(TMP + 1)}, 5, v0")
    A(f"s_lshl_b32 {s(sT0)}, {s(sP)}, 1")
    A(f"v_add_u32 {v(TMP + 1)}, {s(sT0)}, {v(TMP + 1)}")
    A(f"v_lshl_add_u32 {v(TMP + 1)}, {v(TMP + 1)}, 3, {v(TMP)}")
    A.ds(f"ds_write_b64 {v(TMP + 1)}, {v(vSum, 2)}")
    A.ds(f"ds_write_b32 {v(vCsW)}, {v(vCs)}")
    stamp(A, 2)
    A.wait_vm(p1[6])
    A.wait_vm(bt)
    A.wait_lg_all()
    A("s_barrier")
    stamp(A, 3)
    A.ds(f"ds_read_b128 {v(T, 4)}, {v(TMP)}")
    st = A.ds(f"ds_read_b128 {v(T + 4, 4)}, {v(TMP)} offset:16")
    A.ds(f"ds_read_b128 {v(PART, 4)}, {v(vCsR)}")
    cs = A.ds(f"ds_read_b128 {v(PART + 4, 4)}, {v(vCsR)} offset:16")
    A.wait_lg(st)
    A(f"v_pk_add_f32 {v(T, 2)}, {v(T, 2)}, {v(T + 2, 2)}")
    A(f"v_pk_add_f32 {v(T + 4, 2)}, {v(T + 4, 2)}, {v(T + 6, 2)}")
    A(f"v_pk_add_f32 {v(T, 2)}, {v(T, 2)}, {v(T + 4, 2)}")
    split_neg_mean_sigma(A, T, U, augB, vRs, LOG2E, True)
    A.wait_lg(cs)
    for o in colsum_ops(PART, augA, vBias):
        A(o)
    A(f"v_mfma_f32_32x32x16_bf16 {v(accE, 16)}, {v(augA, 4)}, {v(augB, 4)}, {v(accM, 16)}")
    A(f"v_xor_b32 {v(vCsW)}, 0x1800, {v(vCsW)}")
    A(f"v_xor_b32 {v(vCsR)}, 0x1800, {v(vCsR)}")
    A(f"s_mov_b32 {s(sRound)}, 1")
    act_off(sAct, "0")
    for q in range(4):
        A(f"v_add_u32 {v(vWrd + q)}, {P1}, {v(vWrd + q)}")
    A(f"s_cmp_eq_u32 {s(sP)}, {s(sOdd)}")
    A(f"s_cselect_b32 {s(sActive)}, 1, 0")
    A(f"s_mov_b32 {s(sBuf)}, {WA}")

    def epilogue_ops():
        o = []
        for h in range(2):
            E = accE + 8 * h
            for i in range(0, 8, 2):
                o.append(f"v_pk_mul_f32 {v(E + i, 2)}, {v(E + i, 2)}, {v(vRs - (vRs & 1), 2)} " +
                         ("op_sel:[0,1] op_sel_hi:[1,1]" if vRs & 1 else "op_sel_hi:[1,0]"))
            for i in range(8):
                o.append(f"v_exp_f32 {v(T + i)}, {v(E + i)}")
            for i in range(0, 8, 2):
                o.append(f"v_pk_fma_f32 {v(U + i, 2)}, {v(T + i, 2)}, {v(vHalf, 2)}, {v(vOne, 2)} op_sel_hi:[1,0,0]")
            for i in range(0, 8, 2):
                o.append(f"v_pk_fma_f32 {v(U + i, 2)}, {v(T + i, 2)}, {v(U + i, 2)}, {v(vOne, 2)} op_sel_hi:[1,1,0]")
            for i in range(8):
                o.append(f"v_rcp_f32 {v(U + i)}, {v(U + i)}")
            for i in range(0, 8, 2):
                o.append(f"v_pk_fma_f32 {v(E + i, 2)}, {v(E + i, 2)}, {v(U + i, 2)}, {v(E + i, 2)} neg_lo:[1,0,0] neg_hi:[1,0,0]")
            for i in range(4):
                o.append(f"v_cvt_pk_bf16_f32 {v(P + 4 * h + i)}, {v(E + 2 * i)}, {v(E + 2 * i + 1)}")
            o.append(("store", f"buffer_store_dwordx4 {v(P + 4 * h, 4)}, {v(vSt)}, {s(SRD_AO, 4)}, {s(sAct)} offen offset:{1024 * h}"))
        return o

    def emit_op(o):
        if isinstance(o, tuple):
            A.vmem(o[1])
        else:
            A(o)

    A.label("FFN_LOOP")
    A.reset_counts()
    A(f"s_cmp_eq_u32 {s(sRound)}, 3")
    A("s_cbranch_scc1 FFN_LAST")
    A(f"s_add_u32 {s(sT0)}, {s(sRound)}, 1")
    A(f"s_add_u32 {s(sT0)}, {s(sT0)}, {s(sOdd)}")
    A(f"s_and_b32 {s(sT0)}, {s(sT0)}, 3")
    A(f"s_sub_u32 {s(sT0)}, {s(sT0)}, {s(sOdd)}")
    A(f"s_lshl_b32 {s(sT0)}, {s(sT0)}, 7")
    A(f"s_add_u32 s66, {s(sWg)}, {s(sT0)}")
    A(f"s_add_u32 s68, {s(sWl)}, {s(sBuf)}")
    for c in range(7):
        dma(A, vWoff, SRD_W, 66, c * 64 * 3584, 68, 8192 * c)
    A("s_branch FFN_MAIN")
    A.label("FFN_LAST")
    A(f"s_cmp_eq_u32 {s(sActive)}, 0")
    A("s_cbranch_scc1 FFN_EPI")
    A.label("FFN_MAIN")
    A.reset_counts()
    order = [(c, 0) for c in range(7)] + [(c, q) for c in range(7) for q in range(1, 4)]
    DEPTH = 4
    rd = {}

    def wread(n):
        c, q = order[n]
        b = WB + 4 * (n % DEPTH)
        A.ds(f"ds_read_b64_tr_b16 {v(b, 2)}, {v(vWrd + q)} offset:{8192 * c}")
        rd[n] = A.ds(f"ds_read_b64_tr_b16 {v(b + 2, 2)}, {v(vWrd + q)} offset:{8192 * c + 512}")

    epi = epilogue_ops()
    A(f"v_mov_b32 {v(vCs)}, 0")
    for n in range(DEPTH - 1):
        wread(n)
    fill = [1] * 7 + [4] * 5 + [3] * 4 + [3] * 12
    ei = 0
    cs_ops = None
    for n in range(28):
        if n + DEPTH - 1 < 28:
            wread(n + DEPTH - 1)
        A.wait_lg(rd[n])
        c, q = order[n]
        b = WB + 4 * (n % DEPTH)
        cin = "0" if n == 0 else v(accM, 16)
        A(f"v_mfma_f32_32x32x16_bf16 {v(accM, 16)}, {v(b, 4)}, {v(X + 16 * c + 4 * q, 4)}, {cin}")
        if n < 7:
            for k in range(4):
                A(f"v_dot2_f32_bf16 {v(vCs)}, {v(b + k)}, {v(vOnes)}, {v(vCs)}")
        if n == 7:
            csw = A.ds(f"ds_write_b32 {v(vCsW)}, {v(vCs)}")
        if n == 12:
            A.wait_lg(csw)
            A("s_barrier")
            A.ds(f"ds_read_b128 {v(PART, 4)}, {v(vCsR)}")
            csr = A.ds(f"ds_read_b128 {v(PART + 4, 4)}, {v(vCsR)} offset:16")
        if n == 16:
            A.wait_lg(csr)
            cs_ops = colsum_ops(PART, augA, vBias + 1)
        k = fill[n]
        while k > 0 and ei < len(epi):
            emit_op(epi[ei])
            ei += 1
            k -= 1
        if cs_ops and n >= 16:
            for _ in range(2):
                if cs_ops:
                    A(cs_ops.pop(0))
    while ei < len(epi):
        emit_op(epi[ei])
        ei += 1
    assert not cs_ops
    A(f"v_mfma_f32_32x32x16_bf16 {v(accE, 16)}, {v(augA, 4)}, {v(augB, 4)}, {v(accM, 16)}")
    for k in range(1, 3):
        A(f"v_mov_b32 {v(vBias + k)}, {v(vBias + k + 1)}")
    A(f"v_xor_b32 {v(vCsW)}, 0x1800, {v(vCsW)}")
    A(f"v_xor_b32 {v(vCsR)}, 0x1800, {v(vCsR)}")
    act_off(sAct, s(sRound))
    A(f"s_cmp_eq_u32 {s(sRound)}, 3")
    A("s_cbranch_scc1 FFN_FIN")
    A(f"s_mov_b32 {s(sT1)}, {P1}")
    A(f"s_cmp_eq_u32 {s(sBuf)}, {WA}")
    A(f"s_cselect_b32 {s(sT0)}, {-P1 & 0xffffffff:#x}, {s(sT1)}")
    A(f"s_cselect_b32 {s(sBuf)}, {P1}, {WA}")
    for q in range(4):
        A(f"v_add_u32 {v(vWrd + q)}, {s(sT0)}, {v(vWrd + q)}")
    A(f"s_add_u32 {s(sRound)}, {s(sRound)}, 1")
    A("s_waitcnt vmcnt(2)")
    A("s_barrier")
    if DBG:
        A(f"s_cmp_eq_u32 {s(sRound)}, 2")
        A("s_cbranch_scc1 FFN_ST4")
        stamp(A, 5)
        A("s_branch FFN_LOOP")
        A.label("FFN_ST4")
        stamp(A, 4)
    A("s_branch FFN_LOOP")
    A.label("FFN_EPI")
    A.reset_counts()
    for o in epilogue_ops():
        emit_op(o)
    A("s_barrier")
    dump_stamps(A, 0, 16, sWAVE)
    A("s_endpgm")
    A.label("FFN_FIN")
    A.reset_counts()
    stamp(A, 6)
    for o in epilogue_ops():
        emit_op(o)
    dump_stamps(A, 0, 16, sWAVE)
    A("s_endpgm")


def gen_att(A):
    STAGE, XH, WQ = 43008, 16384, 18432
    MISC = 3 * STAGE
    STM, STH, CSP = MISC, MISC + 4096, MISC + 6144
    QSEC = 5120
    vXoff, vHoff, vWoff = 1, 2, 3
    vXrd, vHrd, vWrd = 4, 8, 12
    vDelta, vOnes, vSum, vSumH, vCs = 24, 25, 26, 28, 30
    acc = 36
    accH = acc + 48
    FB = 100
    TMP = 140
    sXg, sXl, sHg, sHl, sWg, sWl, sC, sStage, sHalo, sNext = 52, 53, 54, 55, 56, 57, 58, 59, 60, 61
    sSec1, sSec2 = 62, 63
    A.label("ATT")
    A.reset_counts()
    A(f"s_lshl_b32 {s(sT1)}, {s(sRB)}, 7")
    A(f"s_lshl_b32 {s(sT0)}, {s(sWAVE)}, 4")
    A(f"s_add_u32 {s(sXg)}, {s(sT1)}, {s(sT0)}")
    A(f"s_mul_i32 {s(sXg)}, {s(sXg)}, 896")
    A(f"s_lshl_b32 {s(sXl)}, {s(sWAVE)}, 11")
    A(f"s_lshl_b32 {s(sT0)}, {s(sWAVE)}, 1")
    A(f"s_add_u32 {s(sHg)}, {s(sT1)}, {s(sT0)}")
    A(f"s_sub_u32 {s(sHg)}, {s(sHg)}, 16")
    A(f"s_mul_i32 {s(sHg)}, {s(sHg)}, 896")
    A(f"s_cmp_eq_u32 {s(sRB)}, 0")
    A(f"s_cselect_b32 {s(sHg)}, {OOB}, {s(sHg)}")
    A(f"s_lshl_b32 {s(sHl)}, {s(sWAVE)}, 8")
    A(f"s_mul_i32 {s(sWg)}, {s(sWAVE)}, {8 * 2688}")
    A(f"s_mul_i32 {s(sT0)}, {s(sSEL)}, 112")
    A(f"s_add_u32 {s(sWg)}, {s(sWg)}, {s(sT0)}")
    A(f"s_lshl_b32 {s(sWl)}, {s(sWAVE)}, 10")
    x_dma_voff(A, vXoff, TMP, TMP + 1)
    A(f"s_and_b32 {s(sT0)}, {s(sWAVE)}, 3")
    A(f"s_add_u32 {s(sT0)}, {s(sT0)}, 4")
    A(f"v_and_b32 {v(TMP)}, 7, v0")
    A(f"v_xor_b32 {v(TMP)}, {s(sT0)}, {v(TMP)}")
    A(f"v_lshrrev_b32 {v(TMP + 1)}, 3, v0")
    A(f"v_mul_u32_u24 {v(TMP + 1)}, 896, {v(TMP + 1)}")
    A(f"v_lshl_add_u32 {v(vHoff)}, {v(TMP)}, 4, {v(TMP + 1)}")
    A(f"v_bfe_u32 {v(TMP)}, v0, 4, 1")
    A(f"v_lshlrev_b32 {v(TMP)}, 2, {v(TMP)}")
    A(f"v_and_b32 {v(TMP + 1)}, 7, v0")
    A(f"v_xor_b32 {v(TMP)}, {v(TMP)}, {v(TMP + 1)}")
    A(f"v_min_u32 {v(TMP)}, 6, {v(TMP)}")
    A(f"v_lshrrev_b32 {v(TMP + 1)}, 3, v0")
    A(f"v_mul_u32_u24 {v(TMP + 1)}, 2688, {v(TMP + 1)}")
    A(f"v_lshl_add_u32 {v(vWoff)}, {v(TMP)}, 4, {v(TMP + 1)}")
    A("s_waitcnt lgkmcnt(0)")
    srd(A, SRD_X, 4, X_BYTES)
    srd(A, SRD_W, 6, 448 * 1344 * 2)

    def chunk_dma(c_imm, lds_sgpr, lds_imm, gx, gh, gw):
        A(f"s_add_u32 s70, {s(sXl)}, {lds_sgpr}")
        A(f"s_add_u32 s71, {s(sHl)}, {lds_sgpr}")
        A(f"s_add_u32 s72, {s(sWl)}, {lds_sgpr}")
        dma(A, vXoff, SRD_X, gx, 128 * c_imm, 70, lds_imm)
        dma(A, vXoff, SRD_X, gx, 128 * c_imm + 7168, 70, lds_imm + 1024)
        A("s_mov_b64 exec, 0xffff")
        dma(A, vHoff, SRD_X, gh, 128 * c_imm, 71, lds_imm + XH)
        A("s_mov_b64 exec, -1")
        t = None
        for sec in range(3):
            t = dma(A, vWoff, SRD_W, gw, c_imm * 64 * 2688 + 896 * sec, 72, lds_imm + WQ + 8192 * sec)
        return t

    for c in range(3):
        chunk_dma(c, "0", STAGE * c, sXg, sHg, sWg)
    A(f"s_add_u32 {s(sXg)}, {s(sXg)}, {128 * 3}")
    A(f"s_add_u32 {s(sHg)}, {s(sHg)}, {128 * 3}")
    A(f"s_add_u32 {s(sWg)}, {s(sWg)}, {3 * 64 * 2688}")
    srd(A, SRD_AO, 16, AO_SIZE)
    A(f"s_add_u32 {s(sT0)}, {s(sWAVE)}, 2")
    A(f"s_and_b32 {s(sT0)}, {s(sT0)}, 7")
    A(f"s_cmp_lt_u32 {s(sT0)}, 4")
    A(f"s_cselect_b32 {s(sHalo)}, 1, 0")
    A(f"s_and_b32 {s(sT0)}, {s(sWAVE)}, 1")
    A(f"s_and_b32 {s(sT0)}, {s(sT0)}, {s(sHalo)}")
    A(f"s_add_u32 {s(sSec1)}, {s(sT0)}, 1")
    A(f"s_sub_u32 {s(sSec2)}, 3, {s(sSec1)}")
    x_read_addr(A, vXrd, TMP, TMP + 1, TMP + 2, "0")
    A(f"v_and_b32 {v(TMP)}, 7, v0")
    A(f"v_lshlrev_b32 {v(TMP)}, 1, {v(TMP)}")
    A(f"v_bfe_u32 {v(TMP + 1)}, v0, 4, 1")
    A(f"v_add_u32 {v(TMP)}, {v(TMP)}, {v(TMP + 1)}")
    A(f"v_lshlrev_b32 {v(TMP)}, 7, {v(TMP)}")
    A(f"v_and_b32 {v(TMP + 1)}, 3, v0")
    A(f"v_add_u32 {v(TMP + 1)}, 4, {v(TMP + 1)}")
    A(f"v_lshrrev_b32 {v(TMP + 2)}, 5, v0")
    A(f"s_lshl_b32 {s(sT0)}, {s(sIP)}, 1")
    A(f"v_add_u32 {v(TMP + 2)}, {s(sT0)}, {v(TMP + 2)}")
    A(f"v_xor_b32 {v(TMP + 1)}, {v(TMP + 1)}, {v(TMP + 2)}")
    A(f"v_lshl_add_u32 {v(TMP)}, {v(TMP + 1)}, 4, {v(TMP)}")
    A(f"v_add_u32 {v(vHrd)}, {XH}, {v(TMP)}")
    for q in range(1, 4):
        A(f"v_xor_b32 {v(vHrd + q)}, {32 * q}, {v(vHrd)}")
    A(f"s_mul_i32 {s(sT1)}, {s(sP)}, 56")
    tr_lane_part(A, TMP + 5, TMP, TMP + 1, s(sT1), 3)
    for sl in range(3):
        for q in range(4):
            A(f"s_xor_b32 {s(sT0)}, {s(sIP)}, {q}")
            A(f"s_lshl_b32 {s(sT0)}, {s(sT0)}, 11")
            if sl == 0:
                A(f"s_add_u32 {s(sT0)}, {s(sT0)}, {WQ}")
            else:
                A(f"s_lshl_b32 {s(sT1)}, {s(sSec1 if sl == 1 else sSec2)}, 13")
                A(f"s_add_u32 {s(sT0)}, {s(sT0)}, {s(sT1)}")
                A(f"s_add_u32 {s(sT0)}, {s(sT0)}, {WQ}")
            A(f"v_add_u32 {v(vWrd + 4 * sl + q)}, {s(sT0)}, {v(TMP + 5)}")
    A(f"v_mov_b32 {v(vOnes)}, {ONES:#x}")
    for r in (vSum, vSum + 1, vSumH, vSumH + 1, vCs, vCs + 1, vCs + 2):
        A(f"v_mov_b32 {v(r)}, 0")
    for r in range(64):
        A(f"v_mov_b32 {v(acc + r)}, 0")
    stamp(A, 1)
    A(f"s_mov_b32 {s(sC)}, 0")
    A(f"s_mov_b32 {s(sStage)}, 0")
    A(f"s_cmp_eq_u32 {s(sHalo)}, 1")
    A("s_cbranch_scc1 ATT_LOOP_H")

    def loop(halo):
        L = "H" if halo else "N"
        A.label(f"ATT_LOOP_{L}")
        A.reset_counts()
        A(f"s_cmp_eq_u32 {s(sC)}, 0")
        A(f"s_cbranch_scc1 ATT_W12_{L}")
        A(f"s_cmp_eq_u32 {s(sC)}, 6")
        A(f"s_cbranch_scc1 ATT_W0_{L}")
        A("s_waitcnt vmcnt(6)")
        A(f"s_branch ATT_GO_{L}")
        A.label(f"ATT_W12_{L}")
        A("s_waitcnt vmcnt(12)")
        A(f"s_branch ATT_GO_{L}")
        A.label(f"ATT_W0_{L}")
        A("s_waitcnt vmcnt(0)")
        A.label(f"ATT_GO_{L}")
        A("s_barrier")
        if DBG:
            A(f"s_cmp_lg_u32 {s(sC)}, 0")
            A(f"s_cbranch_scc1 ATT_NS_{L}")
            stamp(A, 2)
            A.label(f"ATT_NS_{L}")
        A(f"s_sub_u32 {s(sT0)}, {s(sC)}, 1")
        A(f"s_cmp_gt_u32 {s(sT0)}, 3")
        A(f"s_cbranch_scc1 ATT_NOLD_{L}")
        A(f"s_add_u32 {s(sNext)}, {s(sStage)}, 2")
        A(f"s_cmp_ge_u32 {s(sNext)}, 3")
        A(f"s_cselect_b32 {s(sT0)}, 3, 0")
        A(f"s_sub_u32 {s(sNext)}, {s(sNext)}, {s(sT0)}")
        A(f"s_mul_i32 {s(sNext)}, {s(sNext)}, {STAGE}")
        chunk_dma(0, s(sNext), 0, sXg, sHg, sWg)
        A(f"s_add_u32 {s(sXg)}, {s(sXg)}, 128")
        A(f"s_add_u32 {s(sHg)}, {s(sHg)}, 128")
        A(f"s_add_u32 {s(sWg)}, {s(sWg)}, {64 * 2688}")
        A.label(f"ATT_NOLD_{L}")
        A.reset_counts()
        rd = {}

        def reads(q):
            b = FB + 20 * (q & 1)
            A.ds(f"ds_read_b128 {v(b, 4)}, {v(vXrd + q)}")
            if halo:
                A.ds(f"ds_read_b128 {v(b + 4, 4)}, {v(vHrd + q)}")
            for sl in range(3):
                A.ds(f"ds_read_b64_tr_b16 {v(b + 8 + 4 * sl, 2)}, {v(vWrd + 4 * sl + q)}")
                rd[q] = A.ds(f"ds_read_b64_tr_b16 {v(b + 10 + 4 * sl, 2)}, {v(vWrd + 4 * sl + q)} offset:512")

        reads(0)
        for q in range(4):
            b = FB + 20 * (q & 1)
            if q == 0:
                reads(1)
            A.wait_lg(rd[q])
            for sl in range(3):
                A(f"v_mfma_f32_32x32x16_bf16 {v(acc + 16 * sl, 16)}, {v(b + 8 + 4 * sl, 4)}, {v(b, 4)}, {v(acc + 16 * sl, 16)}")
            if halo:
                A(f"v_mfma_f32_32x32x16_bf16 {v(accH, 16)}, {v(b + 12, 4)}, {v(b + 4, 4)}, {v(accH, 16)}")
            if q in (0, 2):
                for k in range(4):
                    A(f"v_dot2_f32_bf16 {v(vSum)}, {v(b + k)}, {v(vOnes)}, {v(vSum)}")
                    A(f"v_dot2_f32_bf16 {v(vSum + 1)}, {v(b + k)}, {v(b + k)}, {v(vSum + 1)}")
            if q == 0:
                for sl in range(3):
                    for k in range(4):
                        A(f"v_dot2_f32_bf16 {v(vCs + sl)}, {v(b + 8 + 4 * sl + k)}, {v(vOnes)}, {v(vCs + sl)}")
                if halo:
                    for k in range(4):
                        A(f"v_dot2_f32_bf16 {v(vSumH)}, {v(b + 4 + k)}, {v(vOnes)}, {v(vSumH)}")
                        A(f"v_dot2_f32_bf16 {v(vSumH + 1)}, {v(b + 4 + k)}, {v(b + 4 + k)}, {v(vSumH + 1)}")
            if q + 2 < 4:
                reads(q + 2)
        A(f"s_add_u32 {s(sStage)}, {s(sStage)}, 1")
        A(f"s_cmp_eq_u32 {s(sStage)}, 3")
        A(f"s_mov_b32 {s(sT1)}, {STAGE}")
        A(f"s_cselect_b32 {s(sT0)}, {(-2 * STAGE) & 0xffffffff:#x}, {s(sT1)}")
        A(f"s_cselect_b32 {s(sStage)}, 0, {s(sStage)}")
        A(f"v_mov_b32 {v(vDelta)}, {s(sT0)}")
        for r in range(4):
            A(f"v_add_u32 {v(vXrd + r)}, {v(vDelta)}, {v(vXrd + r)}")
        if halo:
            for r in range(4):
                A(f"v_add_u32 {v(vHrd + r)}, {v(vDelta)}, {v(vHrd + r)}")
        for r in range(12):
            A(f"v_add_u32 {v(vWrd + r)}, {v(vDelta)}, {v(vWrd + r)}")
        A(f"s_add_u32 {s(sC)}, {s(sC)}, 1")
        A(f"s_cmp_lt_u32 {s(sC)}, 7")
        A(f"s_cbranch_scc1 ATT_LOOP_{L}")

    loop(False)
    A("s_branch ATT_POST")
    loop(True)
    A.label("ATT_POST")
    A.reset_counts()
    stamp(A, 3)
    R = 4
    A(f"v_and_b32 {v(R)}, 31, v0")
    A(f"v_lshrrev_b32 {v(R + 1)}, 5, v0")
    A(f"v_lshlrev_b32 {v(R + 2)}, 5, {v(R)}")
    A(f"s_lshl_b32 {s(sT0)}, {s(sI)}, 10")
    A(f"s_add_u32 {s(sT0)}, {s(sT0)}, {STM}")
    A(f"v_add_u32 {v(R + 3)}, {s(sT0)}, {v(R + 2)}")
    A(f"s_lshl_b32 {s(sT0)}, {s(sP)}, 1")
    A(f"v_add_u32 {v(R + 4)}, {s(sT0)}, {v(R + 1)}")
    A(f"v_lshl_add_u32 {v(R + 4)}, {v(R + 4)}, 3, {v(R + 3)}")
    A.ds(f"ds_write_b64 {v(R + 4)}, {v(vSum, 2)}")
    A(f"v_lshlrev_b32 {v(R + 5)}, 6, {v(R)}")
    A(f"v_add_u32 {v(R + 5)}, {STH}, {v(R + 5)}")
    A(f"s_and_b32 {s(sT0)}, {s(sWAVE)}, 1")
    A(f"s_lshl_b32 {s(sT1)}, {s(sP)}, 1")
    A(f"s_add_u32 {s(sT0)}, {s(sT0)}, {s(sT1)}")
    A(f"s_lshl_b32 {s(sT0)}, {s(sT0)}, 1")
    A(f"v_add_u32 {v(R + 4)}, {s(sT0)}, {v(R + 1)}")
    A(f"v_lshl_add_u32 {v(R + 4)}, {v(R + 4)}, 3, {v(R + 5)}")
    A(f"s_cmp_eq_u32 {s(sHalo)}, 0")
    A("s_cbranch_scc1 ATT_NOHS")
    A(f"ds_write_b64 {v(R + 4)}, {v(vSumH, 2)}")
    A.label("ATT_NOHS")
    A(f"s_mul_i32 {s(sT0)}, {s(sP)}, 3072")
    A(f"s_add_u32 {s(sT0)}, {s(sT0)}, {CSP}")
    A(f"v_add_u32 {v(R + 6)}, {s(sT0)}, {v(R + 2)}")
    A(f"s_lshl_b32 {s(sT0)}, {s(sSec1)}, 10")
    A(f"v_add_u32 {v(R + 7)}, {s(sT0)}, {v(R + 6)}")
    A(f"s_lshl_b32 {s(sT0)}, {s(sSec2)}, 10")
    A(f"v_add_u32 {v(R + 8)}, {s(sT0)}, {v(R + 6)}")
    A(f"s_lshl_b32 {s(sT0)}, {s(sI)}, 1")
    A(f"v_add_u32 {v(R + 9)}, {s(sT0)}, {v(R + 1)}")
    A(f"v_lshlrev_b32 {v(R + 9)}, 2, {v(R + 9)}")
    for sl in range(3):
        A(f"v_add_u32 {v(R + 10)}, {v(R + 6 + sl)}, {v(R + 9)}")
        A(f"ds_write_b32 {v(R + 10)}, {v(vCs + sl)}")
    A("s_waitcnt lgkmcnt(0)")
    A("s_barrier")
    stamp(A, 4)
    A.reset_counts()
    PART, augA, augB, augBH = 100, 124, 136, 140
    ST, UT = 144, 160
    vRs, vRsH, vRsQ = 24, 26, 28
    A.ds(f"ds_read_b128 {v(ST, 4)}, {v(R + 3)}")
    st = A.ds(f"ds_read_b128 {v(ST + 4, 4)}, {v(R + 3)} offset:16")
    for k in range(4):
        sth = A.ds(f"ds_read_b128 {v(ST + 8 + 4 * k, 4)}, {v(R + 5)} offset:{16 * k}") if k < 2 else None
    csr = []
    for sl in range(3):
        A.ds(f"ds_read_b128 {v(PART + 8 * sl, 4)}, {v(R + 6 + sl)}")
        csr.append(A.ds(f"ds_read_b128 {v(PART + 8 * sl + 4, 4)}, {v(R + 6 + sl)} offset:16"))
    A.ds(f"ds_read_b128 {v(UT + 8, 4)}, {v(R + 5)} offset:32")
    sth = A.ds(f"ds_read_b128 {v(UT + 12, 4)}, {v(R + 5)} offset:48")
    A.wait_lg(st)
    A(f"v_pk_add_f32 {v(ST, 2)}, {v(ST, 2)}, {v(ST + 2, 2)}")
    A(f"v_pk_add_f32 {v(ST + 4, 2)}, {v(ST + 4, 2)}, {v(ST + 6, 2)}")
    A(f"v_pk_add_f32 {v(ST, 2)}, {v(ST, 2)}, {v(ST + 4, 2)}")
    split_neg_mean_sigma(A, ST, UT, augB, vRs, None, False)
    A(f"v_mul_f32 {v(vRsQ)}, {fbits(28 ** -0.5 * 1.4426950408889634):#x}, {v(vRs)}")
    for sl in range(3):
        A.wait_lg(csr[sl])
        for o in colsum_ops(PART + 8 * sl, augA + 4 * sl, None):
            A(o)
        A(f"v_mov_b32 {v(augA + 4 * sl + 2)}, 0")
        A(f"v_mov_b32 {v(augA + 4 * sl + 3)}, 0")
    for sl in range(3):
        A(f"v_mfma_f32_32x32x16_bf16 {v(acc + 16 * sl, 16)}, {v(augA + 4 * sl, 4)}, {v(augB, 4)}, {v(acc + 16 * sl, 16)}")
    A.wait_lg(sth)
    A(f"s_cmp_eq_u32 {s(sHalo)}, 0")
    A("s_cbranch_scc1 ATT_NOHA")
    A(f"v_pk_add_f32 {v(ST + 8, 2)}, {v(ST + 8, 2)}, {v(ST + 10, 2)}")
    A(f"v_pk_add_f32 {v(ST + 12, 2)}, {v(ST + 12, 2)}, {v(ST + 14, 2)}")
    A(f"v_pk_add_f32 {v(UT + 8, 2)}, {v(UT + 8, 2)}, {v(UT + 10, 2)}")
    A(f"v_pk_add_f32 {v(UT + 12, 2)}, {v(UT + 12, 2)}, {v(UT + 14, 2)}")
    A(f"v_pk_add_f32 {v(ST + 8, 2)}, {v(ST + 8, 2)}, {v(ST + 12, 2)}")
    A(f"v_pk_add_f32 {v(UT + 8, 2)}, {v(UT + 8, 2)}, {v(UT + 12, 2)}")
    A(f"v_pk_add_f32 {v(ST + 8, 2)}, {v(ST + 8, 2)}, {v(UT + 8, 2)}")
    split_neg_mean_sigma(A, ST + 8, UT, augBH, vRsH, None, False)
    A(f"v_mfma_f32_32x32x16_bf16 {v(accH, 16)}, {v(augA + 4, 4)}, {v(augBH, 4)}, {v(accH, 16)}")
    A.label("ATT_NOHA")
    W0, W1 = 4, 5
    A(f"v_and_b32 {v(6)}, 15, v0")
    A(f"v_lshrrev_b32 {v(7)}, 2, {v(6)}")
    A(f"v_and_b32 {v(8)}, 1, {v(7)}")
    A(f"v_lshlrev_b32 {v(8)}, 1, {v(8)}")
    A(f"v_xor_b32 {v(7)}, {v(7)}, {v(8)}")
    A(f"v_lshrrev_b32 {v(8)}, 5, v0")
    A(f"v_lshlrev_b32 {v(8)}, 1, {v(8)}")
    A(f"v_xor_b32 {v(8)}, {v(8)}, {v(7)}")
    A(f"v_lshlrev_b32 {v(8)}, 4, {v(8)}")
    A(f"v_lshl_add_u32 {v(8)}, {v(6)}, 6, {v(8)}")
    A(f"v_bfe_u32 {v(9)}, v0, 4, 1")
    A(f"v_mul_u32_u24 {v(9)}, {QSEC}, {v(9)}")
    A(f"v_add_u32 {v(8)}, {v(8)}, {v(9)}")
    A(f"s_mul_i32 {s(sT0)}, {s(sP)}, {6 * QSEC}")
    A(f"s_add_u32 {s(sT1)}, {s(sI)}, 1")
    A(f"s_lshl_b32 {s(sT1)}, {s(sT1)}, 10")
    A(f"s_add_u32 s70, {s(sT0)}, {s(sT1)}")
    A(f"s_mul_i32 s71, {s(sSec1)}, {2 * QSEC}")
    A(f"s_mul_i32 s72, {s(sSec2)}, {2 * QSEC}")
    A(f"s_add_u32 s73, s71, {s(sT0)}")
    A("s_add_u32 s71, s71, s70")
    A("s_add_u32 s72, s72, s70")

    def put(accb, scale, sbase, pk):
        sel = "op_sel_hi:[1,0]"
        for i in range(0, 16, 2):
            A(f"v_pk_mul_f32 {v(accb + i, 2)}, {v(accb + i, 2)}, {v(scale, 2)} {sel}")
        for i in range(8):
            A(f"v_cvt_pk_bf16_f32 {v(pk + i)}, {v(accb + 2 * i)}, {v(accb + 2 * i + 1)}")
        A("s_mov_b32 exec_lo, 0")
        A(f"v_mov_b32 {v(pk + 6)}, 0")
        A(f"v_mov_b32 {v(pk + 7)}, 0")
        A("s_mov_b32 exec_lo, -1")
        A(f"v_add_u32 {v(W0)}, {sbase}, {v(8)}")
        A(f"v_xor_b32 {v(W1)}, 16, {v(W0)}")
        A(f"ds_write_b128 {v(W0)}, {v(pk, 4)}")
        A(f"ds_write_b128 {v(W1)}, {v(pk + 4, 4)}")

    put(acc, vRsQ, "s70", 100)
    put(acc + 16, vRs, "s71", 108)
    put(acc + 32, vRs, "s72", 116)
    A(f"s_cmp_eq_u32 {s(sHalo)}, 0")
    A("s_cbranch_scc1 ATT_NOHP")
    put(accH, vRsH, "s73", 124)
    A.label("ATT_NOHP")
    A("s_waitcnt lgkmcnt(0)")
    stamp(A, 5)
    A("s_barrier")
    stamp(A, 6)
    A.reset_counts()
    bC, bP = 12, 16
    A(f"v_lshrrev_b32 {v(9)}, 4, v0")
    A(f"v_lshlrev_b32 {v(10)}, 2, {v(9)}")
    A(f"v_sub_u32 {v(10)}, {v(6)}, {v(10)}")
    A(f"v_mov_b32 {v(11)}, {fbits(-1e9):#x}")
    A(f"s_or_b32 {s(sT0)}, {s(sRB)}, {s(sI)}")
    A(f"s_cmp_eq_u32 {s(sT0)}, 0")
    A(f"s_cselect_b32 s74, 1000, 0")
    for r in range(4):
        A(f"v_subrev_u32 {v(20)}, {r}, {v(10)}")
        A(f"v_cmp_gt_u32 vcc, 8, {v(20)}")
        A(f"v_cndmask_b32 {v(bC + r)}, {v(11)}, 0, vcc")
        A(f"v_add_u32 {v(20)}, s74, {v(20)}")
        A(f"v_cmp_gt_i32 vcc, -8, {v(20)}")
        A(f"v_cndmask_b32 {v(bP + r)}, {v(11)}, 0, vcc")
    A(f"v_xor_b32 {v(20)}, {v(9)}, {v(7)}")
    A(f"v_lshlrev_b32 {v(20)}, 4, {v(20)}")
    A(f"v_lshl_add_u32 {v(20)}, {v(6)}, 6, {v(20)}")
    A(f"s_mul_i32 {s(sT0)}, {s(sP)}, {6 * QSEC}")
    A(f"s_lshl_b32 {s(sT1)}, {s(sI)}, 10")
    A(f"s_add_u32 s75, {s(sT0)}, {s(sT1)}")
    A(f"v_add_u32 {v(20)}, s75, {v(20)}")
    A(f"v_and_b32 {v(21)}, 1, {v(9)}")
    A(f"v_lshlrev_b32 {v(21)}, 1, {v(21)}")
    A(f"v_xor_b32 {v(21)}, {v(21)}, {v(9)}")
    A(f"v_bfe_u32 {v(22)}, v0, 1, 1")
    A(f"v_xor_b32 {v(21)}, {v(21)}, {v(22)}")
    A(f"v_lshlrev_b32 {v(21)}, 4, {v(21)}")
    A(f"v_and_b32 {v(22)}, 1, v0")
    A(f"v_lshl_add_u32 {v(21)}, {v(22)}, 3, {v(21)}")
    A(f"v_lshrrev_b32 {v(22)}, 2, {v(6)}")
    A(f"v_lshl_add_u32 {v(22)}, {v(9)}, 2, {v(22)}")
    A(f"v_lshl_add_u32 {v(21)}, {v(22)}, 6, {v(21)}")
    A(f"v_add_u32 {v(21)}, s75, {v(21)}")
    A(f"v_xor_b32 {v(22)}, 32, {v(21)}")
    A(f"v_lshrrev_b32 {v(23)}, 1, {v(9)}")
    A(f"v_lshlrev_b32 {v(23)}, 10, {v(23)}")
    A(f"v_and_b32 {v(24)}, 1, {v(9)}")
    A(f"v_lshl_add_u32 {v(23)}, {v(24)}, 9, {v(23)}")
    A(f"v_lshl_add_u32 {v(23)}, {v(6)}, 4, {v(23)}")
    A(f"s_lshl_b32 {s(sT0)}, {s(sRB)}, 2")
    A(f"s_add_u32 {s(sT0)}, {s(sT0)}, {s(sI)}")
    A(f"s_mul_i32 {s(sT0)}, {s(sT0)}, {NKS}")
    A(f"s_lshl_b32 {s(sT1)}, {s(sSEL)}, 1")
    A(f"s_add_u32 {s(sT1)}, {s(sT1)}, {s(sP)}")
    A(f"s_lshl_b32 {s(sT1)}, {s(sT1)}, 1")
    A(f"s_add_u32 {s(sT0)}, {s(sT0)}, {s(sT1)}")
    A(f"s_lshl_b32 s76, {s(sT0)}, 10")
    B = {}
    for par in range(2):
        b = 40 + 60 * par
        Qf, Kp, Kc, Vf, Sp, Sc, M, M2, Pf, O = b, b + 4, b + 8, b + 12, b + 20, b + 24, b + 28, b + 30, b + 32, b + 36
        B[par] = (Qf, Kp, Kc, Vf, Sp, Sc, M, M2, Pf, O)
        po = par * QSEC
        A.ds(f"ds_read_b128 {v(Qf, 4)}, {v(20)} offset:{po + 1024}")
        A.ds(f"ds_read_b128 {v(Kp, 4)}, {v(20)} offset:{po + 2 * QSEC}")
        B[(par, "k")] = A.ds(f"ds_read_b128 {v(Kc, 4)}, {v(20)} offset:{po + 2 * QSEC + 1024}")
    for par in range(2):
        Qf, Kp, Kc, Vf, Sp, Sc, M, M2, Pf, O = B[par]
        po = par * QSEC + 4 * QSEC
        for dt in range(2):
            A.ds(f"ds_read_b64_tr_b16 {v(Vf + 4 * dt, 2)}, {v(21 + dt)} offset:{po}")
            B[(par, "v")] = A.ds(f"ds_read_b64_tr_b16 {v(Vf + 4 * dt + 2, 2)}, {v(21 + dt)} offset:{po + 1024}")
    for par in range(2):
        Qf, Kp, Kc, Vf, Sp, Sc, M, M2, Pf, O = B[par]
        A.wait_lg(B[(par, "k")])
        A(f"v_mfma_f32_16x16x32_bf16 {v(Sp, 4)}, {v(Kp, 4)}, {v(Qf, 4)}, {v(bP, 4)}")
        A(f"v_mfma_f32_16x16x32_bf16 {v(Sc, 4)}, {v(Kc, 4)}, {v(Qf, 4)}, {v(bC, 4)}")
    steps = {0: [], 1: []}
    for par in range(2):
        Qf, Kp, Kc, Vf, Sp, Sc, M, M2, Pf, O = B[par]
        o = steps[par]
        o.append(f"v_max3_f32 {v(M)}, {v(Sp)}, {v(Sp + 1)}, {v(Sp + 2)}")
        o.append(f"v_max3_f32 {v(M + 1)}, {v(Sc)}, {v(Sc + 1)}, {v(Sc + 2)}")
        o.append(f"v_max3_f32 {v(M)}, {v(M)}, {v(Sp + 3)}, {v(Sc + 3)}")
        o.append(f"v_max_f32 {v(M)}, {v(M)}, {v(M + 1)}")
        o.append(f"v_mov_b32 {v(M + 1)}, {v(M)}")
        o.append(f"v_permlane32_swap_b32 {v(M)}, {v(M + 1)}")
        o.append(f"v_max_f32 {v(M)}, {v(M)}, {v(M + 1)}")
        o.append(f"v_mov_b32 {v(M + 1)}, {v(M)}")
        o.append(f"v_permlane16_swap_b32 {v(M)}, {v(M + 1)}")
        o.append(f"v_max_f32 {v(M)}, {v(M)}, {v(M + 1)}")
        for i in range(0, 8, 2):
            o.append(f"v_pk_add_f32 {v(Sp + i, 2)}, {v(Sp + i, 2)}, {v(M, 2)} op_sel_hi:[1,0] neg_lo:[0,1] neg_hi:[0,1]")
        for i in range(8):
            o.append(f"v_exp_f32 {v(Sp + i)}, {v(Sp + i)}")
        for i in range(4):
            o.append(f"v_cvt_pk_bf16_f32 {v(Pf + i)}, {v(Sp + 2 * i)}, {v(Sp + 2 * i + 1)}")
        for dt in range(2):
            o.append(("lg", B[(par, "v")]))
            o.append(f"v_mfma_f32_16x16x32_bf16 {v(O + 4 * dt, 4)}, {v(Vf + 4 * dt, 4)}, {v(Pf, 4)}, 0")
        o.append(f"v_pk_add_f32 {v(Sp, 2)}, {v(Sp, 2)}, {v(Sp + 2, 2)}")
        o.append(f"v_pk_add_f32 {v(Sp + 4, 2)}, {v(Sp + 4, 2)}, {v(Sp + 6, 2)}")
        o.append(f"v_pk_add_f32 {v(Sp, 2)}, {v(Sp, 2)}, {v(Sp + 4, 2)}")
        o.append(f"v_add_f32 {v(M2)}, {v(Sp)}, {v(Sp + 1)}")
        o.append(f"v_mov_b32 {v(M2 + 1)}, {v(M2)}")
        o.append(f"v_permlane32_swap_b32 {v(M2)}, {v(M2 + 1)}")
        o.append(f"v_add_f32 {v(M2)}, {v(M2)}, {v(M2 + 1)}")
        o.append(f"v_mov_b32 {v(M2 + 1)}, {v(M2)}")
        o.append(f"v_permlane16_swap_b32 {v(M2)}, {v(M2 + 1)}")
        o.append(f"v_add_f32 {v(M2)}, {v(M2)}, {v(M2 + 1)}")
        o.append(f"v_rcp_f32 {v(M2)}, {v(M2)}")
        for i in range(0, 8, 2):
            o.append(f"v_pk_mul_f32 {v(O + i, 2)}, {v(O + i, 2)}, {v(M2, 2)} op_sel_hi:[1,0]")
        for i in range(4):
            o.append(f"v_cvt_pk_bf16_f32 {v(Pf + i)}, {v(O + 2 * i)}, {v(O + 2 * i + 1)}")
        o.append(("st", f"buffer_store_dwordx4 {v(Pf, 4)}, {v(23)}, {s(SRD_AO, 4)}, s76 offen offset:{256 * par}"))
    for x0, x1 in zip(steps[0], steps[1]):
        for x in (x0, x1):
            if isinstance(x, tuple):
                if x[0] == "lg":
                    A.wait_lg(x[1])
                else:
                    A.vmem(x[1])
            else:
                A(x)
    dump_stamps(A, 0, 16, sWAVE)
    A("s_endpgm")


def gen_k1():
    A = Asm()
    A.label(K1)
    A("s_cmp_ge_u32 s2, 256")
    A("s_cbranch_scc1 K1_END")
    stamp(A, 8)
    stamp(A, 0)
    if PREF:
        A("s_getpc_b64 s[92:93]")
        A.label("K1_PC")
        A("s_mov_b32 s94, CODE_END-K1_PC")
        A("s_mov_b32 s95, 0x20000")
        A("v_lshlrev_b32 v2, 7, v0")
        A("v_subrev_u32 v2, 0x8000, v2")
        A("buffer_load_dword v255, v2, s[92:95], 0 offen")
    A("s_load_dwordx4 s[4:7], s[0:1], 0")
    A("s_load_dwordx2 s[8:9], s[0:1], 16")
    A("s_load_dwordx4 s[12:15], s[0:1], 32")
    A("s_load_dwordx2 s[10:11], s[0:1], 48")
    A("s_load_dwordx2 s[16:17], s[0:1], 72")
    A("v_lshrrev_b32 v1, 6, v0")
    A("v_and_b32 v0, 63, v0")
    A(f"v_readfirstlane_b32 {s(sWAVE)}, v1")
    A("s_and_b32 s18, s2, 7")
    A("s_lshr_b32 s19, s2, 3")
    A(f"s_lshr_b32 {s(sRB)}, s18, 2")
    A(f"s_lshl_b32 {s(sRB)}, {s(sRB)}, 3")
    A(f"s_and_b32 {s(sT0)}, s19, 7")
    A(f"s_add_u32 {s(sRB)}, {s(sRB)}, {s(sT0)}")
    A("s_and_b32 s18, s18, 3")
    A(f"s_lshl_b32 {s(sSEL)}, s18, 1")
    A("s_lshr_b32 s19, s19, 3")
    A(f"s_and_b32 {s(sT0)}, s19, 1")
    A(f"s_add_u32 {s(sSEL)}, {s(sSEL)}, {s(sT0)}")
    A(f"s_and_b32 {s(sI)}, {s(sWAVE)}, 3")
    A(f"s_lshr_b32 {s(sP)}, {s(sWAVE)}, 2")
    A(f"s_xor_b32 {s(sIP)}, {s(sI)}, {s(sP)}")
    A("s_cmp_ge_u32 s19, 2")
    A("s_cbranch_scc1 FFN")
    gen_att(A)
    gen_ffn(A)
    A.label("K1_END")
    A("s_endpgm")
    return A.lines
```
